```python
import torch

def _softmax(x, axis=-1):
    return torch.softmax(x, dim=axis)
def _gelu(x):
    return torch.nn.functional.gelu(x, approximate="tanh")
def _silu(x):
    return torch.nn.functional.silu(x)
def _sigmoid(x):
    return torch.sigmoid(x)
def _layernorm(x, axis=-1, eps=1e-5):
    m = x.mean(dim=axis, keepdim=True)
    v = x.var(dim=axis, keepdim=True, unbiased=False)
    return (x - m) / torch.sqrt(v + eps)
def _scatter_add(tgt, idx, src, axis=0):
    return tgt.clone().index_add_(axis, idx, src)
def _segment_sum(src, seg, n):
    out = torch.zeros((n,) + src.shape[1:], dtype=src.dtype)
    return out.index_add_(0, seg, src)
def _pad(x, pw):
    flat = tuple(v for pair in reversed(pw) for v in pair)
    return torch.nn.functional.pad(x, flat)

kernel_name = 'concat_heads__sliding_local_dilated__spectral_fnet__prompt'

def setup_inputs():

    _w = (lambda a: (lambda t: t.to(torch.bfloat16) if t.is_floating_point() else t)(torch.as_tensor(a)))
    def _A_setup():
        B, S, D = 1, 2048, 1024
        return {
            "x": _w((lambda *s: torch.randn(*s, dtype=torch.bfloat16) * 0.2)(B, S, D)),
            "wqkv": _w((lambda *s: torch.randn(*s, dtype=torch.bfloat16) * 0.8)(D, 3 * D)),
            "wo": _w((lambda *s: torch.randn(*s, dtype=torch.bfloat16) * 0.2)(D, D)),
        }
    _A_in = _A_setup()

    def _B_setup():
        B, S, D = 1, 2048, 1024
        ns = torch.arange(S)[:, None] * torch.arange(S)[None, :]
        nd = torch.arange(D)[:, None] * torch.arange(D)[None, :]
        Ws_re = torch.cos(-2.0 * torch.pi * ns / S).to(float)
        Ws_im = torch.sin(-2.0 * torch.pi * ns / S).to(float)
        Wd_re = torch.cos(-2.0 * torch.pi * nd / D).to(float)
        Wd_im = torch.sin(-2.0 * torch.pi * nd / D).to(float)
        return {
            "x": _w((lambda *s: torch.randn(*s, dtype=torch.bfloat16) * 0.05)(B, S, D)),
            "dft_seq_re": _w(Ws_re),
            "dft_seq_im": _w(Ws_im),
            "dft_hid_re": _w(Wd_re),
            "dft_hid_im": _w(Wd_im),
        }
    _B_in = _B_setup()

    return {
        "A_x": _A_in["x"],
        "A_wqkv": _A_in["wqkv"],
        "A_wo": _A_in["wo"],
        "B_x": _B_in["x"],
        "B_dft_seq_re": _B_in["dft_seq_re"],
        "B_dft_seq_im": _B_in["dft_seq_im"],
        "B_dft_hid_re": _B_in["dft_hid_re"],
        "B_dft_hid_im": _B_in["dft_hid_im"],
    }

def reference(A_x, A_wqkv, A_wo, B_x, B_dft_seq_re, B_dft_seq_im, B_dft_hid_re, B_dft_hid_im):
    def _A_ref(x, wqkv, wo):
        B, S, D = x.shape
        H = 32; Dh = D // H
        W, dil = 8, 2
        qkv = (lambda x, *d: x.permute(*d))((x @ wqkv).reshape(B, S, 3, H, Dh), 2, 0, 3, 1, 4)
        q, k, v = qkv[0], qkv[1], qkv[2]
        scale = Dh ** -0.5
        pos = torch.arange(S)
        off = torch.arange(W) * dil
        idx = pos[:, None] - off[None, :]
        mask = idx >= 0
        idx_c = torch.where(mask, idx, 0).reshape(-1)
        kg = k[:, :, idx_c, :].reshape(B, H, S, W, Dh)
        vg = v[:, :, idx_c, :].reshape(B, H, S, W, Dh)
        logits = torch.einsum("bhsd,bhswd->bhsw", q, kg) * scale
        logits = torch.where(mask[None, None, :, :], logits, -1e9)
        attn = _softmax(logits, axis=-1)
        o = torch.einsum("bhsw,bhswd->bhsd", attn, vg)
        return (lambda x, *d: x.permute(*d))(o, 0, 2, 1, 3).reshape(B, S, D) @ wo

    def _B_ref(x, dft_seq_re, dft_seq_im, dft_hid_re, dft_hid_im):
        a = torch.einsum("bsd,ed->bse", x, dft_hid_re)
        b = torch.einsum("bsd,ed->bse", x, dft_hid_im)
        y = torch.einsum("ts,bse->bte", dft_seq_re, a) - torch.einsum("ts,bse->bte", dft_seq_im, b)
        return y

    a = _A_ref(A_x, A_wqkv, A_wo)
    b = _B_ref(B_x, B_dft_seq_re, B_dft_seq_im, B_dft_hid_re, B_dft_hid_im)
    return torch.concatenate([a, b], axis=-1)
```

```python
import re

TRANS = ("v_exp_f32", "v_log_f32", "v_rcp_f32", "v_rsq_f32", "v_sqrt_f32", "v_sin_f32", "v_cos_f32")
REG = re.compile(r"^(-|abs\(|neg\()?([vsa])(?:(\d+)|\[(\d+):(\d+)\])\)?$")

def regs(tok):
    tok = tok.strip()
    if tok in ("vcc", "exec"): return {(tok, 0), (tok, 1)}
    if tok in ("vcc_lo", "exec_lo"): return {(tok[:-3], 0)}
    if tok in ("vcc_hi", "exec_hi"): return {(tok[:-3], 1)}
    if tok == "m0": return {("m0", 0)}
    m = REG.match(tok)
    if not m: return set()
    k = m.group(2)
    if m.group(3) is not None: return {(k, int(m.group(3)))}
    return {(k, i) for i in range(int(m.group(4)), int(m.group(5)) + 1)}

class Ins:
    def __init__(self, text):
        self.text = text
        t = text.split(";")[0].strip()
        self.label = t.endswith(":")
        self.directive = t.startswith(".")
        self.op = "" if (self.label or self.directive or not t) else t.split()[0]
        rest = t[len(self.op):].strip() if self.op else ""
        rest = re.sub(r"\s(op_sel|op_sel_hi|neg_lo|neg_hi):\[[^\]]*\]", "", rest)
        ops = [o.strip() for o in rest.split(",")] if rest else []
        if ops:
            last = ops[-1].split()
            self.mods = last[1:]
            ops[-1] = last[0] if last else ""
        else:
            self.mods = []
        self.ops = ops
        op = self.op
        self.mfma = op.startswith("v_mfma")
        self.valu = op.startswith("v_") and not self.mfma
        self.trans = op.replace("_e32", "").replace("_e64", "") in TRANS
        self.vmem = op.startswith(("buffer_", "global_"))
        self.ds = op.startswith("ds_")
        self.salu = op.startswith("s_") and not op.startswith(("s_waitcnt", "s_nop", "s_barrier", "s_branch", "s_cbranch", "s_endpgm", "s_load", "s_mem", "s_sleep", "s_setprio"))
        self.lds_dma = self.vmem and "lds" in self.mods
        self.dst, self.src = set(), set()
        R = [regs(o) for o in ops]
        if self.mfma:
            self.dst = R[0]; self.srcA = R[1]; self.srcB = R[2]; self.srcC = R[3]
            self.src = R[1] | R[2] | R[3]
            self.passes = 8 if "32x32" in op else 4
        elif self.valu:
            if op.startswith(("v_permlane16_swap", "v_permlane32_swap", "v_swap")):
                self.dst = R[0] | R[1]; self.src = R[0] | R[1]
            elif op.startswith(("v_add_co", "v_sub_co", "v_addc_co", "v_subb_co")):
                self.dst = R[0] | R[1]; self.src = set().union(*R[2:])
            elif op.startswith("v_cmpx"):
                self.dst = R[0] | regs("exec"); self.src = set().union(*R[1:])
            else:
                self.dst = R[0]; self.src = set().union(*R[1:]) if len(R) > 1 else set()
                if op.startswith(("v_fmac", "v_pk_fmac", "v_dot2c", "v_writelane")): self.src |= R[0]
        elif self.vmem:
            if op.startswith(("buffer_inv", "buffer_wbl2")):
                pass
            elif self.lds_dma:
                self.src = set().union(*R) | regs("m0")
            elif "_load" in op:
                self.dst = R[0]; self.src = set().union(*R[1:])
            elif "_store" in op:
                self.src = set().union(*R)
                self.data = R[0] if op.startswith("buffer_") else R[1]
            else:
                self.src = set().union(*R)
                if "sc0" in self.mods: self.dst = R[0]
        elif self.ds:
            if op.startswith(("ds_read", "ds_bpermute", "ds_permute", "ds_swizzle")) or "_rtn" in op:
                self.dst = R[0]; self.src = set().union(*R[1:])
            else:
                self.src = set().union(*R)
        elif self.salu:
            if op.startswith(("s_cmp", "s_bitcmp")):
                self.src = set().union(*R)
            else:
                self.dst = R[0] if R else set(); self.src = set().union(*R[1:]) if len(R) > 1 else set()
                if "saveexec" in op: self.dst |= regs("exec")
        elif op.startswith(("s_load", "s_mem")):
            self.dst = R[0]; self.src = set().union(*R[1:]) if len(R) > 1 else set()
    def states(self):
        if self.op == "s_nop": return int(self.ops[0], 0) + 1
        return 1 if self.op else 0

def vonly(s): return {r for r in s if r[0] in "va" and len(r[0]) == 1}
def sonly(s): return {r for r in s if r[0] in ("s", "vcc")}

def need(p, c):
    n = 0
    if p.valu and not p.op.startswith("v_nop"):
        pv, ps = vonly(p.dst), sonly(p.dst)
        if c.mfma and pv & c.src: n = max(n, 2)
        if c.valu and c.op.startswith("v_permlane") and pv & c.src: n = max(n, 2)
        if c.valu and ("dpp" in c.op or any(m.startswith(("row_", "quad_perm")) for m in c.mods)) and pv & c.src: n = max(n, 2)
        if c.valu and c.op.startswith(("v_readlane", "v_readfirstlane")) and pv & c.src: n = max(n, 1)
        if p.trans and (c.valu or c.vmem or c.ds) and pv & c.src: n = max(n, 1)
        if ps:
            if c.vmem and ps & c.src: n = max(n, 5)
            if c.valu and ps & (c.src | (regs("vcc") if c.op.startswith(("v_cndmask", "v_addc", "v_subb")) else set())):
                n = max(n, 4 if c.op.startswith(("v_readlane", "v_writelane")) else 2)
            if c.salu and ps & c.src: n = max(n, 2)
        if regs("exec") & p.dst:
            if c.mfma or c.op.startswith(("v_readlane", "v_readfirstlane", "v_writelane", "v_permlane")): n = max(n, 4)
    if p.mfma:
        far = 8 if p.passes == 4 else 12
        if c.mfma:
            if p.dst & (c.srcA | c.srcB): n = max(n, far)
            if p.dst & c.srcC and not (p.dst == c.srcC and p.passes == c.passes): n = max(n, far - 2)
            if p.dst & c.dst and not (p.dst == c.srcC): n = max(n, far)
        elif c.valu or c.vmem or c.ds:
            if p.dst & (c.src | c.dst): n = max(n, far)
        if c.valu and p.srcC & c.dst: n = max(n, 3 if p.passes == 4 else 7)
    if p.vmem and "_store" in p.op and ("x3" in p.op or "x4" in p.op):
        if (c.valu or c.mfma) and p.data & c.dst: n = max(n, 2)
        elif (c.ds or c.vmem) and p.data & c.dst: n = max(n, 1)
    if p.salu and ("m0", 0) in p.dst and c.lds_dma: n = max(n, 1)
    return n

class Asm:
    def __init__(self):
        self.lines = []
    def __call__(self, *texts):
        for t in texts:
            for l in t.split("\n"):
                if l.strip(): self.lines.append(l.strip())
    def label(self, n): self.lines.append(n + ":")
    def finish(self, verbose=False):
        ins = [Ins(l) for l in self.lines]
        W = 13
        self.inserted = 0
        def edges():
            labels = {x.text.split(":")[0]: k for k, x in enumerate(ins) if x.label}
            preds = {}
            for k, x in enumerate(ins):
                if x.op.startswith(("s_branch", "s_cbranch")) and x.ops[0] in labels:
                    preds.setdefault(labels[x.ops[0]], []).append(k)
            return preds
        def worst_gap(i, preds):
            c, worst = ins[i], 0
            stack = [(i - 1, 0, False)]
            seen = set()
            while stack:
                j, dist, via = stack.pop()
                if j < 0 or dist >= W or (j, dist, via) in seen: continue
                seen.add((j, dist, via))
                x = ins[j]
                if x.label:
                    for b in preds.get(j, []): stack.append((b, dist, True))
                    stack.append((j - 1, dist, False)); continue
                if not x.op:
                    stack.append((j - 1, dist, via)); continue
                if x.op in ("s_branch", "s_endpgm") and not via: continue
                worst = max(worst, need(x, c) - dist)
                stack.append((j - 1, dist + x.states(), False))
            return worst
        changed = True
        while changed:
            changed = False
            preds = edges()
            i = 0
            while i < len(ins):
                c = ins[i]
                if c.op and (c.valu or c.mfma or c.vmem or c.ds or c.salu):
                    w = worst_gap(i, preds)
                    if w > 0:
                        if verbose: print(f"  nop {w} before: {c.text}")
                        ins.insert(i, Ins(f"s_nop {w - 1}"))
                        self.inserted += w
                        changed = True
                        preds = edges()
                        i += 1
                i += 1
        return "\n".join((x.text if (x.label or x.directive) else "    " + x.text) for x in ins) + "\n"

def vr(b, n=1):
    return f"v{b}" if n == 1 else f"v[{b}:{b + n - 1}]"
def sr(b, n=1):
    return f"s{b}" if n == 1 else f"s[{b}:{b + n - 1}]"

def interleave(main, fill, start=0, step=1):
    out, k = [], 0
    for i, m in enumerate(main):
        out.append(m)
        if i >= start and (i - start) % step == 0 and k < len(fill):
            f = fill[k]; k += 1
            out.extend(f if isinstance(f, list) else [f])
    for f in fill[k:]:
        out.extend(f if isinstance(f, list) else [f])
    return out
```

```python
import sys, argparse
from asmlib import Asm, vr, sr, interleave

NAME = "concat_heads__sliding_local_dilated__spectral_fnet__prompt"
MF = "v_mfma_f32_16x16x32_bf16"

S_X, S_W, S_WO, S_BX, S_SR, S_SI, S_HR, S_HI, S_OUT, S_WS, S_DBG = [28 + 4 * i for i in range(11)]
sWAVE, sRB, sHG, sRB2, sCB, sS2, sHF, sK1, sJ = range(72, 81)
sT0, sT1, sT2, sT3, sT4, sT5, sT6, sT7 = range(81, 89)
sCNT, sSLOT, sOX, sOW = 89, 90, 91, 92
sXD, sHD, sWD = 93, 94, 95
sSTAMP = 96
WS_O, WS_V, WS_X, WS_FLAG, WS_STAMP = 0, 4 << 20, 8 << 20, 9 << 20, 16 << 20
SLOT, XREG = 43008, 18432
L_BX, BXROW = 129024, 2080
L_VB, L_XB, L_E, L_RED = 131072, 147456, 155648, 131072
LDS_BYTES = 163840
vTID, vLANE, vI, vG = 0, 1, 2, 3
vSTAMP = 255

class Gen:
    def __init__(self, opt):
        self.o = opt
        self.a = Asm()
        self.uid = 0

    def stamp(self, idx, cyc=False):
        if not self.o.stamps: return
        self.a(f"{'s_memtime' if cyc else 's_memrealtime'} {sr(sSTAMP, 2)}", "s_waitcnt lgkmcnt(0)",
               f"v_writelane_b32 v{vSTAMP}, s{sSTAMP}, {idx}")

    def dump_stamps(self):
        if not self.o.stamps: return
        a = self.a
        a(f"s_lshl_b32 s{sT0}, s2, 3", f"s_add_u32 s{sT0}, s{sT0}, s{sWAVE}", f"s_lshl_b32 s{sT0}, s{sT0}, 6",
          f"s_add_u32 s{sT0}, s{sT0}, {WS_STAMP}", f"v_and_b32 v4, 63, v{vTID}", "v_lshlrev_b32 v4, 2, v4",
          "s_mov_b64 exec, 0xffff", f"buffer_store_dword v{vSTAMP}, v4, {sr(S_WS, 4)}, s{sT0} offen", "s_mov_b64 exec, -1")

    def prologue(self, name):
        a = self.a
        a(f".globl {name}", ".p2align 8", f".type {name},@function")
        a.label(name)
        a("s_cmp_ge_u32 s2, 256", f"s_cbranch_scc1 {name}_end")
        a("s_load_dwordx16 s[4:19], s[0:1], 0", "s_load_dwordx4 s[20:23], s[0:1], 64", "s_load_dwordx2 s[24:25], s[0:1], 80")
        if self.o.stamps: a(f"v_mov_b32 v{vSTAMP}, 0")
        a(f"v_lshrrev_b32 v4, 6, v{vTID}", f"v_and_b32 v{vLANE}, 63, v{vTID}", f"v_readfirstlane_b32 s{sWAVE}, v4",
          f"v_and_b32 v{vI}, 15, v{vTID}", f"v_lshrrev_b32 v{vG}, 4, v{vLANE}")
        a(f"s_and_b32 s{sT0}, s2, 7", f"s_lshr_b32 s{sT1}, s2, 3")
        a(f"s_and_b32 s{sT2}, s{sT0}, 1", f"s_lshl_b32 s{sT2}, s{sT2}, 3", f"s_and_b32 s{sT3}, s{sT1}, 7", f"s_add_u32 s{sRB}, s{sT2}, s{sT3}")
        a(f"s_lshr_b32 s{sT2}, s{sT0}, 1", f"s_lshl_b32 s{sT2}, s{sT2}, 2", f"s_lshr_b32 s{sT3}, s{sT1}, 3", f"s_add_u32 s{sHG}, s{sT2}, s{sT3}")
        a(f"s_lshl_b32 s{sT2}, s{sT0}, 1", f"s_lshr_b32 s{sT3}, s{sT1}, 4", f"s_add_u32 s{sRB2}, s{sT2}, s{sT3}", f"s_and_b32 s{sCB}, s{sT1}, 15")
        a(f"s_mov_b32 s{sK1}, s{sRB2}", f"s_mov_b32 s{sJ}, s{sCB}")
        a(f"s_lshl_b32 s{sT2}, s{sT0}, 4", f"s_lshr_b32 s{sT3}, s{sT1}, 1", f"s_add_u32 s{sS2}, s{sT2}, s{sT3}", f"s_and_b32 s{sHF}, s{sT1}, 1")
        sizes = [4 << 20, 6 << 20, 2 << 20, 4 << 20, 8 << 20, 8 << 20, 2 << 20, 2 << 20, 8 << 20, 256 << 20, 256]
        srds = [S_X, S_W, S_WO, S_BX, S_SR, S_SI, S_HR, S_HI, S_OUT, S_WS, S_DBG]
        ptrs = [4, 6, 8, 10, 12, 14, 16, 18, 20, 24, 22]
        for s, n in zip(srds, sizes):
            a(f"s_mov_b32 s{s + 2}, {hex(n)}", f"s_mov_b32 s{s + 3}, 0x20000")
        a("s_waitcnt lgkmcnt(0)")
        for s, p in zip(srds, ptrs):
            a(f"s_mov_b32 s{s}, s{p}", f"s_mov_b32 s{s + 1}, s{p + 1}")
        self.stamp(0); self.stamp(14, True)

    def epilogue(self, name):
        self.stamp(15, True); self.stamp(13)
        self.dump_stamps()
        self.a.label(name + "_end")
        self.a("s_endpgm")

    B1_F1R, B1_F1I, B1_C2, B1_S2, B1_NS2, B1_GRE, B1_GIM = 16, 20, 24, 28, 32, 36, 40
    B1_TC, B1_TS = 44, 52
    def b1_issue(self):
        a = self.a
        F1R, F1I, C2, NS2, GRE, GIM = self.B1_F1R, self.B1_F1I, self.B1_C2, self.B1_NS2, self.B1_GRE, self.B1_GIM
        a(f"v_lshrrev_b32 v4, 5, v{vLANE}", "v_lshlrev_b32 v4, 1, v4", f"v_and_b32 v5, 3, v{vLANE}", "v_xor_b32 v4, v4, v5",
          "v_lshlrev_b32 v4, 4, v4", f"v_lshrrev_b32 v5, 2, v{vLANE}", "v_lshl_add_u32 v4, v5, 6, v4")
        a(f"s_lshl_b32 s{sT0}, s{sWAVE}, 8", f"s_add_u32 s{sT0}, s{sT0}, s{sS2}", f"s_lshl_b32 s{sT0}, s{sT0}, 11",
          f"s_add_u32 s{sT1}, s{sT0}, {128 * 2048}", f"s_mul_i32 s{sT2}, s{sWAVE}, {2 * BXROW}", f"s_add_u32 m0, s{sT2}, {L_BX}")
        a(f"buffer_load_dwordx4 v4, {sr(S_BX, 4)}, s{sT0} offen lds", f"buffer_load_dwordx4 v4, {sr(S_BX, 4)}, s{sT0} offen offset:1024 lds",
          f"s_add_u32 m0, s{sT2}, {L_BX + BXROW}",
          f"buffer_load_dwordx4 v4, {sr(S_BX, 4)}, s{sT1} offen lds", f"buffer_load_dwordx4 v4, {sr(S_BX, 4)}, s{sT1} offen offset:1024 lds")
        a(f"v_lshlrev_b32 v5, 16, v{vI}", f"v_lshl_add_u32 v6, v{vG}, 4, v5", f"v_lshl_add_u32 v7, v{vG}, 3, v5",
          f"v_lshlrev_b32 v8, 17, v{vI}", f"v_lshl_add_u32 v8, v{vG}, 3, v8", f"s_lshl_b32 s{sT0}, s{sHF}, 20")
        a(f"buffer_load_dwordx4 {vr(F1R, 4)}, v6, {sr(S_HR, 4)}, s{sT0} offen", f"buffer_load_dwordx4 {vr(F1I, 4)}, v6, {sr(S_HI, 4)}, s{sT0} offen")
        a(f"buffer_load_dwordx2 {vr(C2, 2)}, v7, {sr(S_HR, 4)}, 0 offen", f"buffer_load_dwordx2 {vr(C2 + 2, 2)}, v7, {sr(S_HR, 4)}, 0 offen offset:32",
          f"buffer_load_dwordx2 {vr(NS2, 2)}, v7, {sr(S_HI, 4)}, 0 offen", f"buffer_load_dwordx2 {vr(NS2 + 2, 2)}, v7, {sr(S_HI, 4)}, 0 offen offset:32",
          f"buffer_load_dwordx2 {vr(GRE, 2)}, v8, {sr(S_HR, 4)}, 0 offen", f"buffer_load_dwordx2 {vr(GIM, 2)}, v8, {sr(S_HI, 4)}, 0 offen")

    def b1_compute(self, younger, sc):
        a = self.a
        F1R, F1I, C2, S2, NS2, GRE, GIM, TC, TS = (self.B1_F1R, self.B1_F1I, self.B1_C2, self.B1_S2, self.B1_NS2,
                                                   self.B1_GRE, self.B1_GIM, self.B1_TC, self.B1_TS)
        XF, ACC, BR, V2, PK, ALT, XA, DF, D3, ZERO = 60, 76, 108, 124, 140, 148, 152, 160, 172, 196
        aRD, aWR, aR3, aST = 9, 11, 12, 14
        lab = f"b1_{self.uid}"; self.uid += 1
        a(f"s_lshl_b32 s{sT0}, s{sHF}, 4", f"v_add_u32 v4, s{sT0}, v{vI}", "v_cvt_f32_u32 v4, v4", "v_mul_f32 v4, 0x3a800000, v4",
          f"v_lshlrev_b32 v5, 2, v{vG}", "v_cvt_f32_u32 v5, v5", "v_mul_f32 v5, v5, v4")
        for dh in range(2):
            for r in range(4):
                n = dh * 4 + r
                a(f"s_mov_b32 s{sT1}, {hex(f32bits(16.0 * dh + r))}", f"v_fma_f32 v6, v4, s{sT1}, v5",
                  f"v_cos_f32 v{TC + n}, v6", f"v_sin_f32 v{TS + n}, v6")
        a(f"s_mul_i32 s{sT2}, s{sWAVE}, {2 * BXROW}", f"s_add_u32 s{sT2}, s{sT2}, {L_BX}",
          f"v_lshrrev_b32 v4, 2, v{vI}", f"v_lshl_add_u32 v4, v{vG}, 3, v4", "v_lshlrev_b32 v4, 6, v4",
          f"v_and_b32 v5, 3, v{vI}", "v_lshl_add_u32 v4, v5, 3, v4", f"v_and_b32 v6, 1, v{vG}", "v_lshl_add_u32 v4, v6, 5, v4",
          f"v_add_u32 v{aRD}, s{sT2}, v4", "v_xor_b32 v4, 32, v4", f"v_add_u32 v{aRD + 1}, s{sT2}, v4")
        a(f"v_lshrrev_b32 v4, 1, v{vI}", f"v_xor_b32 v4, v4, v{vG}", "v_lshlrev_b32 v4, 3, v4", f"v_lshl_add_u32 v4, v{vI}, 6, v4",
          f"v_add_u32 v{aWR}, s{sT2}, v4", "v_xor_b32 v4, 32, v4", f"v_add_u32 v7, s{sT2}, v4", f"v_lshlrev_b32 v8, 3, v{vG}",
          f"v_add_u32 v8, s{sT2}, v8")
        a(f"v_lshrrev_b32 v4, 2, v{vI}", f"v_lshl_add_u32 v4, v{vG}, 2, v4", f"v_mul_u32_u24 v4, {BXROW}, v4",
          f"v_add_u32 v4, {L_BX}, v4", f"v_lshl_add_u32 v15, v5, 3, v4",
          f"v_xor_b32 v5, s{sWAVE}, v5", f"s_lshl_b32 s{sT3}, s{sWAVE}, 7", "v_lshlrev_b32 v5, 3, v5", f"v_add_u32 v4, s{sT3}, v4",
          f"v_add_u32 v{aR3}, v4, v5", "v_xor_b32 v5, 32, v5", f"v_add_u32 v{aR3 + 1}, v4, v5")
        a(f"v_lshlrev_b32 v4, 18, v{vI}", f"v_lshl_add_u32 v{aST}, v{vG}, 4, v4",
          f"s_lshl_b32 s{sT4}, s{sWAVE}, 15", f"s_lshl_b32 s{sT5}, s{sS2}, 7", f"s_add_u32 s{sT4}, s{sT4}, s{sT5}",
          f"s_lshl_b32 s{sT5}, s{sHF}, 6", f"s_add_u32 s{sT4}, s{sT4}, s{sT5}", f"s_add_u32 s{sT4}, s{sT4}, {WS_V}",
          f"s_add_u32 s{sT5}, s{sT4}, 16384")
        for k in range(4): a(f"v_mov_b32 v{ALT + k}, 0xbf803f80")
        a(f"v_mov_b32 v{ZERO}, 0", f"v_mov_b32 v{ZERO + 1}, 0")
        a(f"s_waitcnt vmcnt({younger})")
        for row in range(2):
            for dh in range(2):
                for hr in range(2):
                    a(f"ds_read_b64_tr_b16 {vr(XF + 8 * row + 4 * dh + 2 * hr, 2)}, v{aRD + dh} offset:{row * BXROW + hr * 256}")
        for k in range(4): a(f"v_xor_b32 v{S2 + k}, 0x80008000, v{NS2 + k}")
        a(f"v_xor_b32 v{GRE + 2}, 0x80008000, v{GIM}", f"v_xor_b32 v{GRE + 3}, 0x80008000, v{GIM + 1}",
          f"v_xor_b32 v{GIM + 2}, 0x80008000, v{GRE}", f"v_xor_b32 v{GIM + 3}, 0x80008000, v{GRE + 1}",
          f"v_mov_b32 v{GIM}, v{GRE + 2}", f"v_mov_b32 v{GIM + 1}, v{GRE + 3}")
        a("s_waitcnt lgkmcnt(0)")
        for row in range(2):
            for dh in range(2):
                for c, F in enumerate((F1R, F1I)):
                    a(f"{MF} {vr(ACC + 16 * row + 8 * c + 4 * dh, 4)}, {vr(XF + 8 * row + 4 * dh, 4)}, {vr(F, 4)}, 0")
        for row in range(2):
            re, im = ACC + 16 * row, ACC + 16 * row + 8
            t = 200
            for n in range(8):
                a(f"v_mul_f32 v{t + n}, v{re + n}, v{TC + n}", f"v_mul_f32 v{t + 8 + n}, v{im + n}, v{TC + n}")
            for n in range(8):
                a(f"v_fma_f32 v{t + n}, v{im + n}, v{TS + n}, v{t + n}", f"v_fma_f32 v{t + 8 + n}, -v{re + n}, v{TS + n}, v{t + 8 + n}")
            for n in range(8):
                a(f"v_cvt_pk_bf16_f32 v{BR + 8 * row + n}, v{t + 2 * n}, v{t + 2 * n + 1}")
        for row in range(2):
            br, bi, vre, vim = BR + 8 * row, BR + 8 * row + 4, V2 + 8 * row, V2 + 8 * row + 4
            a(f"{MF} {vr(vre, 4)}, {vr(br, 4)}, {vr(C2, 4)}, 0", f"{MF} {vr(vim, 4)}, {vr(bi, 4)}, {vr(C2, 4)}, 0",
              f"{MF} {vr(XA + 4 * row, 4)}, {vr(br, 4)}, {vr(ALT, 4)}, 0",
              f"{MF} {vr(vre, 4)}, {vr(bi, 4)}, {vr(S2, 4)}, {vr(vre, 4)}", f"{MF} {vr(vim, 4)}, {vr(br, 4)}, {vr(NS2, 4)}, {vr(vim, 4)}")
        for row in range(2):
            for n in range(4):
                a(f"v_cvt_pk_bf16_f32 v{PK + 4 * row + n}, v{V2 + 8 * row + 2 * n}, v{V2 + 8 * row + 2 * n + 1}")
            a(f"v_cvt_pk_bf16_f32 v{XA + 4 * row}, v{XA + 4 * row}, v{XA + 4 * row + 1}",
              f"v_cvt_pk_bf16_f32 v{XA + 4 * row + 1}, v{XA + 4 * row + 2}, v{XA + 4 * row + 3}")
            a(f"ds_write_b64 v{aWR}, {vr(PK + 4 * row, 2)} offset:{row * BXROW}", f"ds_write_b64 v7, {vr(PK + 4 * row + 2, 2)} offset:{row * BXROW}",
              f"ds_write_b64 v8, {vr(XA + 4 * row, 2)} offset:{row * BXROW + 1024}", f"ds_write_b64 v8, {vr(ZERO, 2)} offset:{row * BXROW + 1056}")
        a("s_waitcnt lgkmcnt(0)", "s_barrier")
        for ee in range(2):
            for hr in range(2):
                a(f"ds_read_b64_tr_b16 {vr(DF + 4 * ee + 2 * hr, 2)}, v{aR3 + hr} offset:{ee * 64}")
        a(f"ds_read_b64_tr_b16 {vr(DF + 8, 2)}, v15 offset:1024", f"ds_read_b64_tr_b16 {vr(DF + 10, 2)}, v15 offset:1056")
        a("s_waitcnt lgkmcnt(0)")
        for ee in range(3):
            a(f"{MF} {vr(D3 + 8 * ee, 4)}, {vr(DF + 4 * ee, 4)}, {vr(GRE, 4)}, 0", f"{MF} {vr(D3 + 8 * ee + 4, 4)}, {vr(DF + 4 * ee, 4)}, {vr(GIM, 4)}, 0")
        for ee in range(3):
            for n in range(4):
                a(f"v_cvt_pk_bf16_f32 v{PK + 4 * ee + n}, v{D3 + 8 * ee + 2 * n}, v{D3 + 8 * ee + 2 * n + 1}")
        a(f"s_bitcmp1_b32 s{sS2}, 3", f"s_cbranch_scc0 {lab}_ns")
        for ee in range(2):
            a(f"v_swap_b32 v{PK + 4 * ee}, v{PK + 4 * ee + 2}", f"v_swap_b32 v{PK + 4 * ee + 1}, v{PK + 4 * ee + 3}")
        a.label(lab + "_ns")
        a(f"buffer_store_dwordx4 {vr(PK, 4)}, v{aST}, {sr(S_WS, 4)}, s{sT4} offen{sc}",
          f"buffer_store_dwordx4 {vr(PK + 4, 4)}, v{aST}, {sr(S_WS, 4)}, s{sT5} offen{sc}")
        a(f"s_or_b32 s{sT0}, s{sWAVE}, s{sHF}", f"s_cmp_lg_u32 s{sT0}, 0", f"s_cbranch_scc1 {lab}_nx")
        a(f"v_lshlrev_b32 v4, 13, v{vI}", f"v_lshl_add_u32 v4, v{vG}, 4, v4", f"s_lshl_b32 s{sT0}, s{sS2}, 6", f"s_add_u32 s{sT0}, s{sT0}, {WS_X}",
          f"buffer_store_dwordx4 {vr(PK + 8, 4)}, v4, {sr(S_WS, 4)}, s{sT0} offen{sc}")
        a.label(lab + "_nx")

    LX, LH, LW = 232, 236, 237
    def a1_loader_setup(self):
        a = self.a
        LX, LH, LW = self.LX, self.LH, self.LW
        a(f"s_sub_u32 s{sT0}, s{sWAVE}, 4", f"s_lshl_b32 s{sT1}, s{sRB}, 7", f"s_lshl_b32 s{sT2}, s{sT0}, 5", f"s_add_u32 s{sT2}, s{sT2}, s{sT1}",
          f"v_lshrrev_b32 v4, 3, v{vLANE}", f"v_and_b32 v5, 7, v{vLANE}", f"v_add_u32 v6, s{sT2}, v4", "v_lshlrev_b32 v6, 11, v6",
          f"v_xor_b32 v7, v5, v{vG}", "v_lshl_add_u32 v8, v7, 4, v6", "v_xor_b32 v7, 4, v7", "v_lshl_add_u32 v6, v7, 4, v6")
        a(f"v_mov_b32 v{LX}, v8", f"v_add_u32 v{LX + 1}, {8 * 2048}, v6", f"v_add_u32 v{LX + 2}, {16 * 2048}, v8", f"v_add_u32 v{LX + 3}, {24 * 2048}, v6")
        a(f"s_lshl_b32 s{sT2}, s{sT0}, 2", f"s_add_u32 s{sT2}, s{sT2}, s{sT1}", f"s_sub_u32 s{sT2}, s{sT2}, 16",
          f"v_add_u32 v6, s{sT2}, v4", "v_lshlrev_b32 v6, 11, v6", f"s_lshl_b32 s{sT3}, s{sT0}, 1", f"v_add_u32 v7, s{sT3}, v{vG}",
          "v_and_b32 v7, 7, v7", "v_xor_b32 v7, v5, v7", f"v_lshl_add_u32 v{LH}, v7, 4, v6")
        a(f"s_lshl_b32 s{sT2}, s{sT0}, 4", f"v_add_u32 v6, s{sT2}, v4", f"v_mul_u32_u24 v6, 6144, v6", f"s_lshl_b32 s{sT3}, s{sHG}, 7",
          f"v_add_u32 v6, s{sT3}, v6", f"v_and_b32 v7, 1, v{vG}", "v_lshlrev_b32 v7, 1, v7", "v_xor_b32 v7, v5, v7",
          "v_lshl_add_u32 v8, v7, 4, v6", "v_xor_b32 v7, 4, v7", "v_lshl_add_u32 v6, v7, 4, v6", f"v_add_u32 v6, {8 * 6144}, v6")
        for seg in range(3):
            a(f"v_add_u32 v{LW + 2 * seg}, {seg * 2048}, v8", f"v_add_u32 v{LW + 2 * seg + 1}, {seg * 2048}, v6")
        a(f"s_lshl_b32 s{sXD}, s{sT0}, 12", f"s_add_u32 s{sXD}, s{sXD}, 2048", f"s_lshl_b32 s{sHD}, s{sT0}, 9",
          f"s_lshl_b32 s{sWD}, s{sT0}, 11", f"s_add_u32 s{sWD}, s{sWD}, {XREG}",
          f"s_mov_b32 s{sSLOT}, 0", f"s_mov_b32 s{sOX}, 0", f"s_mov_b32 s{sOW}, 0")

    def a1_stage_issue(self):
        a = self.a
        LX, LH, LW = self.LX, self.LH, self.LW
        a(f"s_add_u32 s{sT0}, s{sSLOT}, s{sXD}", f"s_add_u32 s{sT1}, s{sSLOT}, s{sWD}")
        for seg in range(3):
            for r in range(2):
                a(f"s_add_u32 m0, s{sT1}, {seg * 8192 + r * 1024}", f"buffer_load_dwordx4 v{LW + 2 * seg + r}, {sr(S_W, 4)}, s{sOW} offen lds")
        for p in range(4):
            a(f"s_add_u32 m0, s{sT0}, {p * 1024}", f"buffer_load_dwordx4 v{LX + p}, {sr(S_X, 4)}, s{sOX} offen lds")
        a(f"s_add_u32 m0, s{sSLOT}, s{sHD}", "s_mov_b32 exec_hi, 0", f"buffer_load_dwordx4 v{LH}, {sr(S_X, 4)}, s{sOX} offen lds", "s_mov_b32 exec_hi, -1")
        a(f"s_add_u32 s{sOX}, s{sOX}, 128", f"s_add_u32 s{sOW}, s{sOW}, {64 * 6144}", f"s_add_u32 s{sSLOT}, s{sSLOT}, {SLOT}",
          f"s_cmp_eq_u32 s{sSLOT}, {3 * SLOT}", f"s_cselect_b32 s{sSLOT}, 0, s{sSLOT}")

    def a1_loader_loop(self, nstores, hooks):
        a = self.a
        a(f"s_waitcnt vmcnt({22 + nstores})", "s_barrier")
        self.stamp(2)
        a(f"s_waitcnt vmcnt({11 + nstores})", "s_barrier")
        a(f"s_mov_b32 s{sCNT}, 0")
        lab = f"a1l_{self.uid}"; self.uid += 1
        a.label(lab)
        self.a1_stage_issue()
        a("s_waitcnt vmcnt(11)", "s_barrier")
        if "first" in hooks:
            a(f"s_cmp_lg_u32 s{sCNT}, 0", f"s_cbranch_scc1 {lab}_nf")
            hooks["first"]()
            a.label(lab + "_nf")
        a(f"s_add_u32 s{sCNT}, s{sCNT}, 1", f"s_cmp_lt_u32 s{sCNT}, 13", f"s_cbranch_scc1 {lab}")
        n = hooks[13]() if 13 in hooks else 0
        a(f"s_waitcnt vmcnt({n})", "s_barrier")
        if 14 in hooks: hooks[14]()
        a("s_barrier")
        if 15 in hooks: hooks[15]()

    AQ, AK, AV, AH = 16, 48, 80, 112
    FA, FB = 120, 164
    BO, BC = 208, 214
    SELG, SELS, BIAS = 220, 222, 226
    def a1_compute_setup(self):
        a = self.a
        BO, SELG, SELS, BIAS = self.BO, self.SELG, self.SELS, self.BIAS
        a(f"s_lshr_b32 s{sT0}, s{sWAVE}, 1", f"s_and_b32 s{sT1}, s{sWAVE}, 1", f"s_lshl_b32 s{sT2}, s{sT0}, 13", f"s_add_u32 s{sT2}, s{sT2}, 2048")
        a(f"v_lshrrev_b32 v4, 1, v{vI}", f"v_xor_b32 v4, v4, v{vG}", "v_lshlrev_b32 v4, 4, v4", f"v_lshl_add_u32 v{BO + 2}, v{vI}, 7, v4",
          f"v_xor_b32 v{BO + 3}, 64, v{BO + 2}", f"v_add_u32 v{BO}, s{sT2}, v{BO + 2}", f"v_add_u32 v{BO + 1}, s{sT2}, v{BO + 3}")
        a(f"v_lshrrev_b32 v4, 3, v{vI}", f"v_and_b32 v5, 1, v{vG}", "v_lshl_add_u32 v4, v5, 1, v4", f"s_lshl_b32 s{sT3}, s{sT1}, 1",
          f"v_xor_b32 v4, s{sT3}, v4", "v_lshlrev_b32 v4, 5, v4", f"v_and_b32 v5, 3, v{vI}", "v_lshl_add_u32 v4, v5, 3, v4",
          f"v_lshrrev_b32 v5, 2, v{vI}", f"v_lshl_add_u32 v5, v{vG}, 3, v5", "v_lshl_add_u32 v4, v5, 7, v4",
          f"v_add_u32 v{BO + 4}, {XREG}, v4", "v_xor_b32 v4, 32, v4", f"v_add_u32 v{BO + 5}, {XREG}, v4")
        a(f"v_and_b32 v4, 1, v{vI}", f"v_lshl_add_u32 v5, v{vG}, 2, v4", "v_add_u32 v6, 2, v5", "v_lshlrev_b32 v7, 1, v4",
          f"v_cmp_le_u32 {sr(sT4 + 1, 2)}, v5, v{vI}", f"v_cmp_le_u32 vcc, v6, v{vI}", "v_add_u32 v8, 4, v7")
        a(f"v_cndmask_b32 v5, v7, v8, {sr(sT4 + 1, 2)}", "v_cndmask_b32 v6, v7, v8, vcc", f"s_mov_b32 s{sT3}, 0x01010000")
        for k, t in enumerate((5, 6)):
            a(f"v_mul_lo_u32 v{t}, v{t}, s{sT3}", f"v_add_u32 v{SELG + k}, 0x01000c0c, v{t}")
        a("v_lshlrev_b32 v4, 4, v4", "v_mov_b32 v9, 0x0c0c0c0c")
        for k, (pat, m) in enumerate(((0x0c0c0100, sr(sT4 + 1, 2)), (0x0c0c0302, "vcc"))):
            a(f"v_mov_b32 v7, {hex(pat)}", "v_alignbit_b32 v7, v7, v7, v4",
              f"v_cndmask_b32 v{SELS + k}, v7, v9, {m}", f"v_cndmask_b32 v{SELS + 2 + k}, v9, v7, {m}")
        a(f"s_or_b32 s{sT3}, s{sRB}, s{sT0}", f"s_cmp_eq_u32 s{sT3}, 0", f"s_cselect_b32 s{sT3}, {hex(f32bits(-1e9))}, 0", f"v_mov_b32 v7, s{sT3}",
          f"v_cndmask_b32 v{BIAS}, v7, 0, {sr(sT4 + 1, 2)}", f"v_cndmask_b32 v{BIAS + 1}, v7, 0, vcc")
        for r in range(16, 120): a(f"v_mov_b32 v{r}, 0")

    def a1_reads(self, F, ks):
        BC = self.BC
        xs = [f"ds_read_b128 {vr(F + 4 * (tb + 1), 4)}, v{BC + ks} offset:{tb * 2048}" for tb in range(4)]
        xh = f"ds_read_b128 {vr(F, 4)}, v{BC + 2 + ks}"
        w = lambda seg, b: [f"ds_read_b64_tr_b16 {vr(F + 20 + 8 * seg + 4 * b + 2 * hr, 2)}, v{BC + 4 + b} offset:{seg * 8192 + ks * 4096 + hr * 512}" for hr in range(2)]
        return w(0, 0) + xs + w(0, 1) + w(1, 0) + w(1, 1) + w(2, 0) + w(2, 1) + [xh]

    def a1_mfmas(self, F, th):
        out = []
        X = lambda tb: vr(F + 4 * (tb + 1), 4)
        W = lambda seg, b: vr(F + 20 + 8 * seg + 4 * b, 4)
        for seg, base in ((0, self.AQ), (1, self.AK)):
            for b in range(2):
                for tb in range(4):
                    d = vr(base + 8 * tb + 4 * b, 4)
                    out.append(f"{MF} {d}, {W(seg, b)}, {X(tb)}, {d}")
        for b in range(2):
            for tb in range(4):
                d = vr(self.AV + 8 * tb + 4 * b, 4)
                out.append(f"{MF} {d}, {X(tb)}, {W(2, b)}, {d}")
        for b in range(2):
            d = vr(self.AH + 4 * b, 4)
            out.append(f"{MF} {d}, {W(1, b)}, {vr(F, 4)}, {d}" if th == 0 else f"{MF} {d}, {vr(F, 4)}, {W(2, b)}, {d}")
        return out

    def a1_compute_loop(self, th):
        a = self.a
        BO, BC, FA, FB = self.BO, self.BC, self.FA, self.FB
        rot = lambda idx: [f"v_add_u32 v{BC + k}, s{sSLOT}, v{BO + k}" for k in idx]
        a(f"s_mov_b32 s{sSLOT}, 0", *rot(range(6)))
        a("s_barrier")
        self.stamp(2)
        a(*self.a1_reads(FA, 0))
        a(f"s_mov_b32 s{sCNT}, 0", "s_waitcnt lgkmcnt(0)")
        lab = f"a1c_{th}_{self.uid}"; self.uid += 1
        a(".p2align 6")
        a.label(lab)
        nxt = [f"s_add_u32 s{sSLOT}, s{sSLOT}, {SLOT}", f"s_cmp_eq_u32 s{sSLOT}, {3 * SLOT}", f"s_cselect_b32 s{sSLOT}, 0, s{sSLOT}"]
        m0 = interleave(self.a1_mfmas(FA, th), self.a1_reads(FB, 1) + [nxt] + rot(range(6)))
        a(*m0)
        if self.o.fused: a("s_waitcnt vmcnt(0) lgkmcnt(0)", "s_barrier")
        else: a("s_waitcnt lgkmcnt(0)", "s_barrier")
        m1 = interleave(self.a1_mfmas(FB, th), self.a1_reads(FA, 0) + [[f"s_add_u32 s{sCNT}, s{sCNT}, 1", f"s_cmp_lt_u32 s{sCNT}, 16"]])
        a(*m1)
        a("s_waitcnt lgkmcnt(0)", f"s_cbranch_scc1 {lab}")

    def attention(self, th, sc):
        a = self.a
        AQ, AK, AV, AH, SELG, SELS, BIAS = self.AQ, self.AK, self.AV, self.AH, self.SELG, self.SELS, self.BIAS
        QP, KP, VP, PO, S, O, OP, T = 120, 136, 156, 176, 16, 48, 80, 192
        cvt = lambda d, s: f"v_cvt_pk_bf16_f32 v{d}, v{s}, v{s + 1}"
        a(f"s_and_b32 s{sT1}, s{sWAVE}, 1", f"s_mul_i32 s{sT1}, s{sT1}, 3072", f"s_add_u32 s{sT1}, s{sT1}, {L_E}",
          f"v_lshlrev_b32 v4, 4, v{vLANE}", f"v_add_u32 v5, s{sT1}, v4")
        if th == 0:
            for n in range(4): a(cvt(KP + 16 + n, AK + 24 + 2 * n))
            a(f"ds_write_b128 v5, {vr(KP + 16, 4)}")
            for b in range(2):
                a(cvt(VP + 10 * b + 8, AV + 24 + 4 * b), cvt(VP + 10 * b + 9, AV + 26 + 4 * b))
                a(f"ds_write_b64 v5, {vr(VP + 10 * b + 8, 2)} offset:{1024 + 8 * b}")
            for n in range(4): a(cvt(KP + n, AH + 2 * n))
            last = 3
        else:
            for n in range(4): a(cvt(T + n, AH + 2 * n))
            a(f"ds_write_b128 v5, {vr(T, 4)} offset:2048")
            last = 4
        for tb in range(4):
            for n in range(4): a(cvt(QP + 4 * tb + n, AQ + 8 * tb + 2 * n))
        a("s_waitcnt lgkmcnt(0)", "s_barrier")
        if th == 0:
            for b in range(2): a(f"ds_read_b64 {vr(VP + 10 * b, 2)}, v5 offset:{2048 + 8 * b}")
        else:
            a(f"ds_read_b128 {vr(KP, 4)}, v5")
            for b in range(2): a(f"ds_read_b64 {vr(VP + 10 * b, 2)}, v5 offset:{1024 + 8 * b}")
        for tb in range(last):
            for n in range(4): a(cvt(KP + 4 + 4 * tb + n, AK + 8 * tb + 2 * n))
        for tb in range(last):
            for b in range(2):
                a(cvt(VP + 10 * b + 2 + 2 * tb, AV + 8 * tb + 4 * b), cvt(VP + 10 * b + 3 + 2 * tb, AV + 8 * tb + 4 * b + 2))
        a("s_waitcnt lgkmcnt(0)")
        for qb in (3, 2, 1, 0):
            a(f"{MF} {vr(S + 8 * qb + 4, 4)}, {vr(KP + 4 + 4 * qb, 4)}, {vr(QP + 4 * qb, 4)}, 0",
              f"{MF} {vr(S + 8 * qb, 4)}, {vr(KP + 4 * qb, 4)}, {vr(QP + 4 * qb, 4)}, 0")
        a(f"s_mov_b32 s{sT2}, {hex(f32bits(32 ** -0.5))}", f"s_mov_b32 s{sT3}, {hex(f32bits(1.4426950408889634))}")
        Z, M, U = T, T + 8, T + 12
        order = (3, 2, 1, 0)
        for qb in order:
            for n in range(4): a(cvt(PO + 4 * qb + n, S + 8 * qb + 2 * n))
        for qb in order:
            for k in range(2): a(f"v_perm_b32 v{Z + 2 * qb + k}, v{PO + 4 * qb + 2 + k}, v{PO + 4 * qb + k}, v{SELG + k}")
        for qb in order:
            for k in range(2):
                z = Z + 2 * qb + k
                a(f"v_fma_f32 v{z}, v{z}, s{sT2}, v{BIAS + k}" if qb == 0 else f"v_mul_f32 v{z}, s{sT2}, v{z}")
        for qb in order: a(cvt(M + qb, Z + 2 * qb))
        for qb in order: a(f"v_lshlrev_b32 v{Z + 2 * qb}, 16, v{M + qb}", f"v_and_b32 v{Z + 2 * qb + 1}, 0xffff0000, v{M + qb}")
        def allreduce(op):
            for sw in ("v_permlane16_swap_b32", "v_permlane32_swap_b32"):
                for qb in order: a(f"v_mov_b32 v{U + qb}, v{M + qb}")
                for qb in order: a(f"{sw} v{M + qb}, v{U + qb}")
                for qb in order: a(f"{op} v{M + qb}, v{M + qb}, v{U + qb}")
        for qb in order: a(f"v_max_f32 v{M + qb}, v{Z + 2 * qb}, v{Z + 2 * qb + 1}")
        allreduce("v_max_f32")
        for qb in order:
            for k in range(2): a(f"v_sub_f32 v{Z + 2 * qb + k}, v{Z + 2 * qb + k}, v{M + qb}")
        for n in range(8): a(f"v_mul_f32 v{Z + n}, s{sT3}, v{Z + n}")
        for n in range(8): a(f"v_exp_f32 v{Z + n}, v{Z + n}")
        for qb in order: a(f"v_add_f32 v{M + qb}, v{Z + 2 * qb}, v{Z + 2 * qb + 1}")
        allreduce("v_add_f32")
        for qb in order: a(f"v_rcp_f32 v{M + qb}, v{M + qb}")
        for qb in order:
            for k in range(2): a(f"v_mul_f32 v{Z + 2 * qb + k}, v{Z + 2 * qb + k}, v{M + qb}")
        for qb in order: a(cvt(M + qb, Z + 2 * qb))
        for qb in order:
            for n in range(4): a(f"v_perm_b32 v{PO + 4 * qb + n}, v{M + qb}, v{M + qb}, v{SELS + n}")
        a(f"s_lshl_b32 s{sT0}, s{sRB}, 3", f"s_add_u32 s{sT0}, s{sT0}, {4 * th}", f"s_lshl_b32 s{sT0}, s{sT0}, 5", f"s_lshl_b32 s{sT1}, s{sHG}, 1",
          f"s_add_u32 s{sT0}, s{sT0}, s{sT1}", f"s_and_b32 s{sT1}, s{sWAVE}, 1", f"s_add_u32 s{sT0}, s{sT0}, s{sT1}", f"s_lshl_b32 s{sT0}, s{sT0}, 10")
        for qb in order:
            for b in range(2):
                a(f"{MF} {vr(O + 8 * qb + 4 * b, 4)}, {vr(VP + 10 * b + 2 * qb, 4)}, {vr(PO + 4 * qb, 4)}, 0")
        for qb in order:
            for n in range(4): a(cvt(OP + 4 * qb + n, O + 8 * qb + 2 * n))
            a(f"s_add_u32 s{sT1}, s{sT0}, {WS_O + qb * 32768}", f"buffer_store_dwordx4 {vr(OP + 4 * qb, 4)}, v4, {sr(S_WS, 4)}, s{sT1} offen{sc}")

    WOV = 243
    def wo_setup(self):
        a = self.a
        a(f"v_lshlrev_b32 v5, 1, v{vG}", f"v_and_b32 v6, 7, v{vLANE}", "v_xor_b32 v5, v5, v6", "v_lshlrev_b32 v5, 4, v5",
          f"v_lshrrev_b32 v6, 3, v{vLANE}", f"v_lshl_add_u32 v{self.WOV}, v6, 11, v5")
    def wo_issue(self, first, count, nw, w0):
        a = self.a
        per = -(-count // nw)
        a(f"s_sub_u32 s{sT0}, s{sWAVE}, {w0}", f"s_lshl_b32 s{sT1}, s{sT0}, 10", f"s_lshl_b32 s{sT2}, s{sT0}, 14", f"s_lshl_b32 s{sT3}, s{sCB}, 7",
          f"s_add_u32 s{sT2}, s{sT2}, s{sT3}")
        for k in range(per):
            n = first + k * nw
            lastn = first + count - nw
            n = min(n, lastn)
            a(f"s_add_u32 m0, s{sT1}, {n * 1024}", f"s_add_u32 s{sT3}, s{sT2}, {n * 16384}",
              f"buffer_load_dwordx4 v{self.WOV}, {sr(S_WO, 4)}, s{sT3} offen lds")
        return per

    OF, A2ACC, WF, A2B = 16, 144, 176, 208
    def a2_issue_o(self, sc):
        a = self.a
        a(f"s_and_b32 s{sT0}, s{sWAVE}, 3", f"s_lshl_b32 s{sT0}, s{sT0}, 1", f"s_lshl_b32 s{sT1}, s{sRB2}, 3", f"s_add_u32 s{sT0}, s{sT0}, s{sT1}",
          f"s_lshl_b32 s{sT0}, s{sT0}, 15", f"s_lshr_b32 s{sT1}, s{sWAVE}, 2", f"s_lshl_b32 s{sT1}, s{sT1}, 14", f"s_add_u32 s{sT0}, s{sT0}, s{sT1}",
          f"v_lshlrev_b32 v4, 4, v{vLANE}")
        for h4 in range(4):
            a(f"s_add_u32 s{sT1}, s{sT0}, {WS_O + h4 * 4096}", f"s_add_u32 s{sT2}, s{sT0}, {WS_O + h4 * 4096 + 32768}")
            for h in range(4):
                for t in range(2):
                    a(f"buffer_load_dwordx4 {vr(self.OF + 8 * (4 * h4 + h) + 4 * t, 4)}, v4, {sr(S_WS, 4)}, s{sT1 + t} offen offset:{h * 1024}{sc}")

    def a2_setup(self):
        a = self.a
        B = self.A2B
        a(f"v_lshrrev_b32 v4, 3, v{vI}", f"v_and_b32 v5, 1, v{vG}", "v_lshl_add_u32 v4, v5, 1, v4", "v_lshlrev_b32 v4, 5, v4",
          f"v_and_b32 v5, 3, v{vI}", "v_lshl_add_u32 v4, v5, 3, v4", f"v_lshrrev_b32 v5, 2, v{vI}", f"v_lshl_add_u32 v5, v{vG}, 2, v5",
          "v_lshl_add_u32 v4, v5, 7, v4", f"s_lshr_b32 s{sT1}, s{sWAVE}, 2", f"s_lshl_b32 s{sT1}, s{sT1}, 16", f"v_add_u32 v{B}, s{sT1}, v4")
        for u in range(1, 4): a(f"v_xor_b32 v{B + u}, {32 * u}, v{B}")

    def a2_compute(self):
        a = self.a
        OF, ACC, WF, B = self.OF, self.A2ACC, self.WF, self.A2B
        rd = lambda h: [f"ds_read_b64_tr_b16 {vr(WF + 16 * (h & 1) + 4 * u + 2 * hr, 2)}, v{B + u} offset:{h * 4096 + hr * 2048}" for u in range(4) for hr in range(2)]
        a(*rd(0))
        for h in range(16):
            a(f"s_waitcnt vmcnt({30 - 2 * h}) lgkmcnt(0)")
            mm = []
            for u in range(4):
                for t in range(2):
                    d = vr(ACC + 16 * t + 4 * u, 4)
                    mm.append(f"{MF} {d}, {vr(WF + 16 * (h & 1) + 4 * u, 4)}, {vr(OF + 8 * h + 4 * t, 4)}, {d if h else 0}")
            a(*interleave(mm, rd(h + 1) if h < 15 else []))

    def a2_finish(self):
        a = self.a
        ACC, R, P = self.A2ACC, 16, 32
        lab = f"a2_{self.uid}"; self.uid += 1
        a(f"s_lshl_b32 s{sT0}, s{sWAVE}, 12", f"s_add_u32 s{sT0}, s{sT0}, {L_RED}", f"s_xor_b32 s{sT1}, s{sT0}, 16384",
          f"v_lshlrev_b32 v4, 4, v{vLANE}", f"v_add_u32 v5, s{sT1}, v4", f"v_add_u32 v4, s{sT0}, v4")
        a(f"s_and_b32 s{sT0}, s{sWAVE}, 3", f"s_lshl_b32 s{sT0}, s{sT0}, 1", f"s_lshr_b32 s{sT1}, s{sWAVE}, 2", f"s_add_u32 s{sT0}, s{sT0}, s{sT1}",
          f"s_lshl_b32 s{sT2}, s{sRB2}, 3", f"s_add_u32 s{sT0}, s{sT0}, s{sT2}", f"s_lshl_b32 s{sT0}, s{sT0}, 16", f"s_lshl_b32 s{sT2}, s{sCB}, 7",
          f"s_add_u32 s{sT0}, s{sT0}, s{sT2}",
          f"v_and_b32 v6, 1, v{vG}", "v_lshlrev_b32 v6, 5, v6", f"v_lshrrev_b32 v7, 1, v{vG}", "v_lshl_add_u32 v6, v7, 4, v6",
          f"v_lshl_add_u32 v6, v{vI}, 12, v6")
        a(f"s_cmp_eq_u32 s{sT1}, 0", f"s_cbranch_scc1 {lab}_k0")
        for kh in (1, 0):
            if kh == 0: a.label(lab + "_k0")
            give, keep = ACC + 16 * (1 - kh), ACC + 16 * kh
            for u in range(4): a(f"ds_write_b128 v4, {vr(give + 4 * u, 4)} offset:{u * 1024}")
            a("s_waitcnt lgkmcnt(0)", "s_barrier")
            for u in range(4): a(f"ds_read_b128 {vr(R + 4 * u, 4)}, v5 offset:{u * 1024}")
            for u in range(4):
                a(f"s_waitcnt lgkmcnt({3 - u})")
                for r in range(4): a(f"v_add_f32 v{R + 4 * u + r}, v{R + 4 * u + r}, v{keep + 4 * u + r}")
            if kh == 1: a(f"s_branch {lab}_st")
        a.label(lab + "_st")
        for pr in range(2):
            x, y = R + 8 * pr, R + 8 * pr + 4
            p = P + 4 * pr
            a(f"v_cvt_pk_bf16_f32 v{p}, v{x}, v{x + 1}", f"v_cvt_pk_bf16_f32 v{p + 1}, v{x + 2}, v{x + 3}",
              f"v_cvt_pk_bf16_f32 v{p + 2}, v{y}, v{y + 1}", f"v_cvt_pk_bf16_f32 v{p + 3}, v{y + 2}, v{y + 3}")
        for pr in range(2):
            p = P + 4 * pr
            a(f"v_permlane16_swap_b32 v{p}, v{p + 2}", f"v_permlane16_swap_b32 v{p + 1}, v{p + 3}")
        for pr in range(2):
            a(f"buffer_store_dwordx4 {vr(P + 4 * pr, 4)}, v6, {sr(S_OUT, 4)}, s{sT0} offen offset:{64 * pr}")

    B2M, B2V, B2X = 176, 208, 216
    def b2_issue_m(self):
        a = self.a
        a(f"s_lshl_b32 s{sT0}, s{sWAVE}, 8", f"s_add_u32 s{sT0}, s{sT0}, s{sK1}", f"s_lshl_b32 s{sT0}, s{sT0}, 12",
          f"v_lshlrev_b32 v5, 16, v{vI}", f"v_lshl_add_u32 v5, v{vG}, 4, v5")
        for ks in range(8):
            a(f"buffer_load_dwordx4 {vr(self.B2M + 4 * ks, 4)}, v5, {sr(S_SR if ks < 4 else S_SI, 4)}, s{sT0} offen offset:{(ks & 3) * 64}")
    def b2_issue_v(self, sc):
        a = self.a
        a(f"s_lshl_b32 s{sT0}, s{sK1}, 4", f"s_add_u32 s{sT0}, s{sT0}, s{sJ}", f"s_lshl_b32 s{sT0}, s{sT0}, 14", f"s_lshl_b32 s{sT1}, s{sWAVE}, 11",
          f"s_add_u32 s{sT0}, s{sT0}, s{sT1}", f"s_add_u32 s{sT0}, s{sT0}, {WS_V}", f"v_lshlrev_b32 v5, 4, v{vLANE}",
          f"s_lshl_b32 s{sT1}, s{sK1}, 13", f"s_lshl_b32 s{sT2}, s{sWAVE}, 10", f"s_add_u32 s{sT1}, s{sT1}, s{sT2}", f"s_add_u32 s{sT1}, s{sT1}, {WS_X}")
        a(f"buffer_load_dwordx4 {vr(self.B2V, 4)}, v5, {sr(S_WS, 4)}, s{sT0} offen{sc}",
          f"buffer_load_dwordx4 {vr(self.B2V + 4, 4)}, v5, {sr(S_WS, 4)}, s{sT0} offen offset:1024{sc}",
          f"buffer_load_dwordx4 {vr(self.B2X, 4)}, v5, {sr(S_WS, 4)}, s{sT1} offen{sc}")
    def b2_stage(self):
        a = self.a
        a(f"v_and_b32 v5, 1, v{vG}", f"v_xor_b32 v5, v5, v{vLANE}", "v_lshlrev_b32 v5, 4, v5", f"s_lshl_b32 s{sT0}, s{sWAVE}, 11",
          f"s_add_u32 s{sT0}, s{sT0}, {L_VB}", f"v_add_u32 v5, s{sT0}, v5", f"s_lshl_b32 s{sT0}, s{sWAVE}, 10", f"s_add_u32 s{sT0}, s{sT0}, {L_XB}",
          f"v_lshlrev_b32 v6, 4, v{vLANE}", f"v_add_u32 v6, s{sT0}, v6")
        a(f"ds_write_b128 v5, {vr(self.B2V, 4)}", f"ds_write_b128 v5, {vr(self.B2V + 4, 4)} offset:1024", f"ds_write_b128 v6, {vr(self.B2X, 4)}")
    def b2_compute(self):
        a = self.a
        M, D, ACC, P, B = self.B2M, 16, 80, 92, 100
        lab = f"b2_{self.uid}"; self.uid += 1
        a(f"v_lshrrev_b32 v4, 2, v{vI}", f"v_lshl_add_u32 v4, v{vG}, 3, v4", f"v_and_b32 v5, 3, v{vI}", "v_lshlrev_b32 v6, 6, v4",
          "v_lshl_add_u32 v6, v5, 4, v6", f"v_add_u32 v{B + 4}, {L_XB}, v6",
          "v_lshlrev_b32 v4, 7, v4", "v_lshl_add_u32 v4, v5, 5, v4",
          f"v_lshrrev_b32 v5, 3, v{vI}", "v_lshl_add_u32 v4, v5, 4, v4", f"v_and_b32 v5, 1, v{vG}", "v_lshl_add_u32 v4, v5, 3, v4",
          f"v_add_u32 v{B}, {L_VB}, v4", f"v_xor_b32 v{B + 1}, 8, v{B}", f"v_xor_b32 v{B + 2}, 16, v{B}", f"v_xor_b32 v{B + 3}, 24, v{B}")
        for ks in range(8):
            for b in range(2):
                for hr in range(2):
                    a(f"ds_read_b64_tr_b16 {vr(D + 8 * ks + 4 * b + 2 * hr, 2)}, v{B + 2 * b + (ks >> 2)} offset:{(ks & 3) * 4096 + hr * 512}")
            if ks == 2:
                a(f"s_lshl_b32 s{sT0}, s{sWAVE}, 8", f"s_add_u32 s{sT0}, s{sT0}, s{sK1}", f"v_lshl_add_u32 v4, v{vI}, 4, s{sT0}",
                  "v_sub_u32 v5, 2048, v4", "v_and_b32 v5, 2047, v5", "v_lshlrev_b32 v4, 12, v4", "v_lshlrev_b32 v5, 12, v5",
                  f"v_lshlrev_b32 v6, 4, v{vG}", "v_add_u32 v7, v4, v6", "v_sub_u32 v5, v5, v6", f"s_lshl_b32 s{sT0}, s{sJ}, 6",
                  f"s_add_u32 s{sT1}, s{sT0}, 2048", f"s_sub_u32 s{sT2}, {4096 - 14}, s{sT0}", f"v_add_u32 v5, s{sT2}, v5")
            if ks >= 3:
                k = ks - 3
                a("s_waitcnt lgkmcnt(12)")
                for b in range(2):
                    d = vr(ACC + 4 * b, 4)
                    a(f"{MF} {d}, {vr(D + 8 * k + 4 * b, 4)}, {vr(M + 4 * k, 4)}, {d if k else 0}")
        for k in range(5, 8):
            a(f"s_waitcnt lgkmcnt({4 * (7 - k)})")
            for b in range(2):
                d = vr(ACC + 4 * b, 4)
                a(f"{MF} {d}, {vr(D + 8 * k + 4 * b, 4)}, {vr(M + 4 * k, 4)}, {d}")
        for n in range(4): a(f"v_cvt_pk_bf16_f32 v{P + n}, v{ACC + 2 * n}, v{ACC + 2 * n + 1}")
        for n in range(4): a(f"v_cvt_pk_bf16_f32 v{P + 4 + n}, v{ACC + 7 - 2 * n}, v{ACC + 6 - 2 * n}")
        a(f"buffer_store_dwordx4 {vr(P, 4)}, v7, {sr(S_OUT, 4)}, s{sT1} offen")
        a(f"s_cmp_eq_u32 s{sJ}, 0", f"s_cbranch_scc1 {lab}_j0")
        a(f"buffer_store_dwordx4 {vr(P + 4, 4)}, v5, {sr(S_OUT, 4)}, 0 offen", f"s_branch {lab}_jx")
        a.label(lab + "_j0")
        a(f"buffer_store_dwordx3 {vr(P + 4, 3)}, v5, {sr(S_OUT, 4)}, 0 offen", f"buffer_store_short v{P + 7}, v5, {sr(S_OUT, 4)}, 0 offen offset:12",
          "s_mov_b64 exec, 0xffffffffffff0000" if False else "s_mov_b32 exec_lo, 0xffff0000",
          f"buffer_store_short_d16_hi v{P + 7}, v5, {sr(S_OUT, 4)}, 0 offen offset:14", "s_mov_b32 exec_lo, -1")
        a.label(lab + "_jx")
        a(f"s_cmp_lg_u32 s{sJ}, 15", f"s_cbranch_scc1 {lab}_nx")
        for ks in range(8):
            for hr in range(2):
                a(f"ds_read_b64_tr_b16 {vr(D + 4 * ks + 2 * hr, 2)}, v{B + 4} offset:{(ks & 3) * 2048 + hr * 256 + (ks >> 2) * 8}")
            if ks == 5: a("s_waitcnt lgkmcnt(4)")
        a("s_waitcnt lgkmcnt(0)")
        for ks in range(8):
            d = vr(ACC, 4)
            a(f"{MF} {d}, {vr(D + 4 * ks, 4)}, {vr(M + 4 * ks, 4)}, {d if ks else 0}")
        a(f"v_cvt_pk_bf16_f32 v{ACC + 4}, v{ACC}, v{ACC}", "s_mov_b64 exec, 0xffff",
          f"buffer_store_short v{ACC + 4}, v4, {sr(S_OUT, 4)}, 0 offen offset:3072", "s_mov_b64 exec, -1")
        a.label(lab + "_nx")

    def k_b1(self, name):
        self.prologue(name)
        self.b1_issue(); self.b1_compute(0, "")
        self.epilogue(name)
    def k_a1(self, name):
        a = self.a
        self.prologue(name)
        a(f"s_cmp_ge_u32 s{sWAVE}, 4", f"s_cbranch_scc1 {name}_ld")
        self.a1_compute_setup()
        a(f"s_cmp_ge_u32 s{sWAVE}, 2", f"s_cbranch_scc1 {name}_th1")
        for th in range(2):
            if th: a.label(name + "_th1")
            self.a1_compute_loop(th)
            self.stamp(3)
            self.attention(th, "")
            self.stamp(4)
            a(f"s_branch {name}_fin")
        a.label(name + "_ld")
        self.a1_loader_setup()
        for _ in range(3): self.a1_stage_issue()
        self.stamp(1)
        self.a1_loader_loop(0, {})
        a("s_barrier")
        a.label(name + "_fin")
        self.epilogue(name)
    def k_b2(self, name):
        a = self.a
        self.prologue(name)
        self.b2_issue_v(""); self.b2_issue_m()
        a("s_waitcnt vmcnt(8)")
        self.b2_stage()
        a("s_waitcnt vmcnt(0) lgkmcnt(0)", "s_barrier")
        self.b2_compute()
        self.epilogue(name)
    def k_a2(self, name):
        a = self.a
        self.prologue(name)
        self.wo_setup(); self.wo_issue(0, 128, 8, 0)
        self.a2_issue_o("")
        self.a2_setup()
        a("s_waitcnt vmcnt(32)", "s_barrier")
        self.stamp(2)
        self.a2_compute()
        self.stamp(3)
        self.a2_finish()
        self.epilogue(name)

def f32bits(x):
    import struct
    return struct.unpack("<I", struct.pack("<f", x))[0]

HEADER = open("cdna_kernels/" + NAME + ".s.ref").read().split("; Override launch")[0]

def descriptor(name):
    return f""".amdhsa_kernel {name}
  .amdhsa_next_free_vgpr 256
  .amdhsa_next_free_sgpr 102
  .amdhsa_accum_offset 256
  .amdhsa_group_segment_fixed_size 0
  .amdhsa_kernarg_size 88
  .amdhsa_user_sgpr_count 2
  .amdhsa_user_sgpr_kernarg_segment_ptr 1
  .amdhsa_system_sgpr_workgroup_id_x 1
  .amdhsa_float_denorm_mode_32 3
.end_amdhsa_kernel
"""

def build(opt):
    g = Gen(opt)
    names = []
    for p in opt.phases.split(","):
        n = f"{p}_kernel"; names.append(n)
        getattr(g, "k_" + p)(n)
    body = g.a.finish(opt.verbose)
    launches = "".join(f"; @launch kernel={n} grid=(256,1,1) block=(512,1,1) lds={LDS_BYTES}\n" for n in names)
    out = HEADER + launches + '.amdgcn_target "amdgcn-amd-amdhsa--gfx950"\n.text\n' + body
    out += '.section .rodata,"a"\n' + "".join(".p2align 6\n" + descriptor(n) for n in names)
    return out, g

if __name__ == "__main__":
    ap = argparse.ArgumentParser()
    ap.add_argument("-o", default="/dev/stdout"); ap.add_argument("--phases", default="b1,a1,b2,a2")
    ap.add_argument("--stamps", action="store_true"); ap.add_argument("--verbose", action="store_true")
    ap.add_argument("--fused", action="store_true")
    opt = ap.parse_args()
    txt, g = build(opt)
    open(opt.o, "w").write(txt)
    print("nop states inserted:", g.a.inserted, "lines:", txt.count("\n"), file=sys.stderr)
```

```python
import sys, argparse, struct
from asmlib import Asm, vr, sr, interleave

NAME = "concat_heads__sliding_local_dilated__spectral_fnet__prompt"
KNAME = NAME + "_kernel"
MF = "v_mfma_f32_16x16x32_bf16"

S_X, S_W, S_WO, S_BX, S_SR, S_SI, S_HR, S_HI, S_OUT, S_WS, S_DBG = [28 + 4 * i for i in range(11)]
sWAVE, sRB, sHG, sRB2, sCB, sS2, sHF, sROT1, sROT2 = range(72, 81)
sK1, sJ = sRB2, sCB
sT0, sT1, sT2, sT3, sT4, sT5, sT6, sT7 = range(81, 89)
sCNT, sSLOT, sOX, sOW, sKS, sLD, sOB = range(89, 96)
sSTAMP = 96
WS_O, WS_V, WS_X, WS_FA, WS_FB, WS_STAMP = 0, 4 << 20, 8 << 20, 9 << 20, (9 << 20) + 4096, 16 << 20
SLOT, XREG = 43008, 18432
L_BX, BXROW = 131072, 2048
L_E = 36 * 1024
L_VB, L_XB = 131072, 147456
LDS_BYTES = 163840
vTID, vLANE, vI, vG = 0, 1, 2, 3
vSTAMP = 255
SC = " sc1"

def f32bits(x): return struct.unpack("<I", struct.pack("<f", x))[0]
def cvt(d, s, s2=None): return f"v_cvt_pk_bf16_f32 v{d}, v{s}, v{s + 1 if s2 is None else s2}"

class Gen:
    def __init__(self, opt):
        self.o = opt
        self.a = Asm()
        self.uid = 0
    def lab(self, p):
        self.uid += 1
        return f"{p}_{self.uid}"

    def stamp(self, idx, cyc=False):
        if not self.o.stamps: return
        self.a(f"{'s_memtime' if cyc else 's_memrealtime'} {sr(sSTAMP, 2)}", "s_waitcnt lgkmcnt(0)",
               f"v_writelane_b32 v{vSTAMP}, s{sSTAMP}, {idx}")
    def dump_stamps(self):
        if not self.o.stamps: return
        self.a(f"s_lshl_b32 s{sT0}, s2, 3", f"s_add_u32 s{sT0}, s{sT0}, s{sWAVE}", f"s_lshl_b32 s{sT0}, s{sT0}, 6",
               f"s_add_u32 s{sT0}, s{sT0}, {WS_STAMP}", f"v_lshlrev_b32 v4, 2, v{vLANE}",
               "s_mov_b64 exec, 0xffff", f"buffer_store_dword v{vSTAMP}, v4, {sr(S_WS, 4)}, s{sT0} offen")
        if self.o.iterstamp:
            self.a(f"s_add_u32 s{sT0}, s{sT0}, {1 << 20}", f"buffer_store_dword v254, v4, {sr(S_WS, 4)}, s{sT0} offen",
                   f"s_add_u32 s{sT0}, s{sT0}, {1 << 20}", f"buffer_store_dword v253, v4, {sr(S_WS, 4)}, s{sT0} offen")
        self.a("s_mov_b64 exec, -1")

    def prologue(self):
        a = self.a
        a(f".globl {KNAME}", ".p2align 8", f".type {KNAME},@function")
        a.label(KNAME)
        a("s_cmp_ge_u32 s2, 256", "s_cbranch_scc1 L_end")
        a("s_load_dwordx16 s[4:19], s[0:1], 0", "s_load_dwordx4 s[20:23], s[0:1], 64", "s_load_dwordx2 s[24:25], s[0:1], 80")
        if self.o.stamps: a(f"v_mov_b32 v{vSTAMP}, 0")
        a(f"v_lshrrev_b32 v4, 6, v{vTID}", f"v_and_b32 v{vLANE}, 63, v{vTID}", f"v_readfirstlane_b32 s{sWAVE}, v4",
          f"v_and_b32 v{vI}, 15, v{vTID}", f"v_lshrrev_b32 v{vG}, 4, v{vLANE}")
        x, li = sT0, sT1
        a(f"s_and_b32 s{x}, s2, 7", f"s_lshr_b32 s{li}, s2, 3")
        a(f"s_and_b32 s{sT2}, s{x}, 1", f"s_lshl_b32 s{sT4}, s{sT2}, 3", f"s_and_b32 s{sT3}, s{li}, 7", f"s_add_u32 s{sRB}, s{sT4}, s{sT3}")
        a(f"s_lshr_b32 s{sT5}, s{x}, 1", f"s_lshl_b32 s{sT4}, s{sT5}, 2", f"s_lshr_b32 s{sT3}, s{li}, 3", f"s_add_u32 s{sHG}, s{sT4}, s{sT3}")
        if self.o.norot:
            a(f"s_mov_b32 s{sROT1}, 0")
        else:
            a(f"s_mul_i32 s{sT2}, s{sT2}, 10", f"s_add_u32 s{sT2}, s{sT2}, s{sT4}", f"s_lshr_b32 s{sT5}, s{sT5}, 1",
              f"s_add_u32 s{sT2}, s{sT2}, s{sT5}", f"s_and_b32 s{sROT1}, s{sT2}, 15")
        a(f"s_lshl_b32 s{sT2}, s{x}, 1", f"s_lshr_b32 s{sT3}, s{li}, 4", f"s_add_u32 s{sRB2}, s{sT2}, s{sT3}", f"s_and_b32 s{sCB}, s{li}, 15",
          f"s_lshl_b32 s{sT3}, s{sT3}, 3", f"s_xor_b32 s{sROT2}, s{sCB}, s{sT3}")
        a(f"s_lshl_b32 s{sT2}, s{x}, 4", f"s_lshr_b32 s{sT3}, s{li}, 1", f"s_add_u32 s{sS2}, s{sT2}, s{sT3}", f"s_and_b32 s{sHF}, s{li}, 1")
        sizes = [4 << 20, 6 << 20, 2 << 20, 4 << 20, 8 << 20, 8 << 20, 2 << 20, 2 << 20, 8 << 20, 256 << 20, 256]
        srds = [S_X, S_W, S_WO, S_BX, S_SR, S_SI, S_HR, S_HI, S_OUT, S_WS, S_DBG]
        ptrs = [4, 6, 8, 10, 12, 14, 16, 18, 20, 24, 22]
        for s, n in zip(srds, sizes):
            a(f"s_mov_b32 s{s + 2}, {hex(n)}", f"s_mov_b32 s{s + 3}, 0x20000")
        a("s_waitcnt lgkmcnt(0)")
        for s, p in zip(srds, ptrs):
            a(f"s_mov_b64 {sr(s, 2)}, {sr(p, 2)}")
        self.stamp(0); self.stamp(14, True)

    def kstep(self, idx=sKS):
        return [f"s_lshl_b32 s{sOX}, s{idx}, 7", f"s_mul_i32 s{sOW}, s{idx}, {64 * 6144}", f"s_add_u32 s{idx}, s{idx}, 1", f"s_and_b32 s{idx}, s{idx}, 15"]

    LA, WOV = 16, 244
    def loader_setup(self):
        a, LA = self.a, self.LA
        lw = sT0
        a(f"s_sub_u32 s{lw}, s{sWAVE}, 4", f"s_lshl_b32 s{sLD}, s{lw}, 10", f"s_lshl_b32 s{sT1}, s{sRB}, 7", f"s_sub_u32 s{sT1}, s{sT1}, 16",
          f"v_lshrrev_b32 v4, 3, v{vLANE}", f"v_and_b32 v5, 7, v{vLANE}", f"v_add_u32 v6, s{sT1}, v4", "v_lshlrev_b32 v6, 11, v6",
          f"v_xor_b32 v7, v5, v{vG}", "v_lshl_add_u32 v6, v7, 4, v6")
        for m in range(6):
            a(f"s_add_u32 s{sT2}, s{lw}, {3 * m}", f"s_and_b32 s{sT3}, s{sT2}, 1", f"s_lshl_b32 s{sT3}, s{sT3}, 6", f"s_lshl_b32 s{sT2}, s{sT2}, 14",
              f"v_xor_b32 v8, s{sT3}, v6", f"v_add_u32 v{LA + m}, s{sT2}, v8")
        a("v_mul_u32_u24 v6, 6144, v4", f"v_and_b32 v7, 1, v{vG}", "v_lshlrev_b32 v7, 1, v7", "v_xor_b32 v7, v5, v7", "v_lshl_add_u32 v6, v7, 4, v6",
          f"s_lshl_b32 s{sT1}, s{sHG}, 7")
        for m in range(8):
            a(f"s_add_u32 s{sT2}, s{lw}, {3 * m}", f"s_and_b32 s{sT3}, s{sT2}, 1", f"s_lshl_b32 s{sT3}, s{sT3}, 6", f"v_xor_b32 v8, s{sT3}, v6",
              f"s_and_b32 s{sT3}, s{sT2}, 7", f"s_mul_i32 s{sT3}, s{sT3}, {8 * 6144}", f"s_lshr_b32 s{sT2}, s{sT2}, 3", f"s_lshl_b32 s{sT2}, s{sT2}, 11",
              f"s_add_u32 s{sT2}, s{sT2}, s{sT3}", f"s_add_u32 s{sT2}, s{sT2}, s{sT1}", f"v_add_u32 v{LA + 6 + m}, s{sT2}, v8")
        a(f"s_mov_b32 s{sSLOT}, 0", f"s_mov_b32 s{sKS}, s{sROT1}")

    def stage_issue(self):
        a, LA = self.a, self.LA
        a(*self.kstep(), f"s_add_u32 s{sT0}, s{sSLOT}, s{sLD}")
        for m in list(range(6, 14)) + list(range(6)):
            srd, off = (S_X, sOX) if m < 6 else (S_W, sOW)
            a(f"s_add_u32 m0, s{sT0}, {m * 3072}", f"buffer_load_dwordx4 v{LA + m}, {sr(srd, 4)}, s{off} offen lds")
        a(f"s_add_u32 s{sSLOT}, s{sSLOT}, {SLOT}", f"s_cmp_eq_u32 s{sSLOT}, {3 * SLOT}", f"s_cselect_b32 s{sSLOT}, 0, s{sSLOT}")

    def wo_setup(self):
        self.a(f"v_lshlrev_b32 v5, 1, v{vG}", f"v_and_b32 v6, 7, v{vLANE}", "v_xor_b32 v5, v5, v6", "v_lshlrev_b32 v5, 4, v5",
               f"v_lshrrev_b32 v6, 3, v{vLANE}", "v_lshl_add_u32 v5, v6, 11, v5", f"s_lshl_b32 s{sT0}, s{sCB}, 7", f"v_add_u32 v{self.WOV}, s{sT0}, v5")
    def wo_issue(self, first, end):
        a = self.a
        l = self.lab("wo")
        a(f"s_add_u32 s{sT0}, s{sWAVE}, {first - 4}" if first >= 4 else f"s_sub_u32 s{sT0}, s{sWAVE}, {4 - first}")
        a.label(l)
        a(f"s_lshr_b32 s{sT1}, s{sT0}, 2", f"s_add_u32 s{sT1}, s{sT1}, s{sROT2}", f"s_and_b32 s{sT1}, s{sT1}, 15", f"s_lshl_b32 s{sT1}, s{sT1}, 2",
          f"s_and_b32 s{sT2}, s{sT0}, 0x43", f"s_or_b32 s{sT1}, s{sT1}, s{sT2}", f"s_lshl_b32 m0, s{sT0}, 10", f"s_lshl_b32 s{sT1}, s{sT1}, 14",
          f"buffer_load_dwordx4 v{self.WOV}, {sr(S_WO, 4)}, s{sT1} offen lds",
          f"s_add_u32 s{sT0}, s{sT0}, 4", f"s_cmp_lt_u32 s{sT0}, {end}", f"s_cbranch_scc1 {l}")

    def loader_main(self):
        a = self.a
        self.loader_setup()
        for _ in range(3): self.stage_issue()
        self.stamp(1)
        self.wo_setup()
        a("s_waitcnt vmcnt(28)", "s_barrier")
        self.stamp(2)
        a("s_waitcnt vmcnt(14)", "s_barrier", f"s_mov_b32 s{sCNT}, 0")
        l = self.lab("ld")
        a.label(l)
        self.stage_issue()
        a("s_waitcnt vmcnt(14)", "s_barrier", f"s_add_u32 s{sCNT}, s{sCNT}, 1", f"s_cmp_lt_u32 s{sCNT}, 13", f"s_cbranch_scc1 {l}")

    def background_tail(self):
        a = self.a
        self.wo_issue(42, 84)
        a("s_waitcnt vmcnt(10)", "s_barrier")
        self.wo_issue(84, 128)
        a("s_barrier", "s_barrier")
        self.stamp(3)
        self.b1_consts()
        self.wo_issue(0, 36)
        self.b1_twiddles()

    PX, PW, PB, PD = 16, 17, 18, 20
    def pf_stage(self):
        if self.o.nopf: return ["s_nop 0"]
        return self.kstep() + [f"buffer_load_dword v{self.PD}, v{self.PX}, {sr(S_X, 4)}, s{sOX} offen",
                               f"buffer_load_dword v{self.PD + 1}, v{self.PW}, {sr(S_W, 4)}, s{sOW} offen"]
    def prefetch_main(self):
        a, o = self.a, self.o
        PX, PW, PB, PD = self.PX, self.PW, self.PB, self.PD
        a(f"s_and_b32 s{sT0}, s{sHG}, 3", f"s_mul_i32 s{sT0}, s{sT0}, 36", f"s_lshl_b32 s{sT1}, s{sRB}, 7", f"s_add_u32 s{sT0}, s{sT0}, s{sT1}",
          f"s_sub_u32 s{sT0}, s{sT0}, 16", f"v_add_u32 v4, s{sT0}, v{vLANE}", "v_lshlrev_b32 v4, 11, v4", f"v_cmp_gt_u32 vcc, 36, v{vLANE}",
          "v_bfrev_b32 v5, 1", f"s_and_b32 s{sT0}, s{sRB}, 7", f"s_mul_i32 s{sT0}, s{sT0}, 24", f"v_cndmask_b32 v{PX}, v5, v4, vcc",
          f"v_add_u32 v4, s{sT0}, v{vLANE}", "v_and_b32 v6, 63, v4", "v_lshrrev_b32 v4, 6, v4", "v_mul_u32_u24 v6, 6144, v6",
          "v_lshl_add_u32 v4, v4, 11, v6", f"s_lshl_b32 s{sT0}, s{sHG}, 7", f"v_add_u32 v4, s{sT0}, v4", f"v_cmp_gt_u32 vcc, 24, v{vLANE}",
          f"s_mov_b32 s{sKS}, s{sROT1}", f"v_cndmask_b32 v{PW}, v5, v4, vcc")
        D = o.pfd
        assert D <= 14
        n0 = min(D, o.pf0)
        for _ in range(n0): a(*self.pf_stage())
        a(f"s_lshl_b32 s{sT0}, s{sRB}, 7", f"s_lshl_b32 s{sT1}, s{sHG}, 2", f"s_add_u32 s{sT0}, s{sT0}, s{sT1}", f"s_add_u32 s{sT0}, s{sT0}, {WS_FA}",
          f"s_lshl_b32 s{sT1}, s2, 2", f"s_add_u32 s{sT1}, s{sT1}, {WS_FB}", "v_mov_b32 v22, 0", "v_mov_b32 v23, 1", "s_mov_b64 exec, 1",
          f"buffer_store_dword v22, v22, {sr(S_WS, 4)}, s{sT0} offen{SC}", f"buffer_store_dword v22, v22, {sr(S_WS, 4)}, s{sT1} offen{SC}",
          "s_mov_b64 exec, -1")
        for _ in range(D - n0): a(*self.pf_stage())
        self.wo_setup()
        a(f"v_lshrrev_b32 v4, 5, v{vLANE}", "v_lshlrev_b32 v4, 1, v4", f"v_and_b32 v5, 3, v{vLANE}", "v_xor_b32 v4, v4, v5",
          "v_lshlrev_b32 v4, 4, v4", f"v_lshrrev_b32 v5, 2, v{vLANE}", f"v_lshl_add_u32 v{PB}, v5, 6, v4")
        a("s_barrier", "s_barrier")
        for s in range(13):
            if s + D <= 15: a(*self.pf_stage())
            if s == 0:
                a(f"v_lshlrev_b32 v4, 16, v{vLANE}", f"buffer_load_dword v{PD}, v4, {sr(S_HR, 4)}, 0 offen", f"buffer_load_dword v{PD}, v4, {sr(S_HI, 4)}, 0 offen",
                  f"v_lshlrev_b32 v4, 7, v{vLANE}", f"s_lshl_b32 s{sT0}, s2, 13", f"buffer_load_dword v{PD}, v4, {sr(S_WO, 4)}, s{sT0} offen")
            if s == 1:
                a(f"s_waitcnt vmcnt({3 if o.nopf else 2 * (D - n0) + 7})", "s_mov_b64 exec, 1", f"buffer_atomic_add v23, v22, {sr(S_DBG, 4)}, 0 offen{SC}", "s_mov_b64 exec, -1")
            if s == 10:
                a(f"v_lshrrev_b32 v4, 1, v{vI}", "v_lshlrev_b32 v4, 16, v4", f"v_and_b32 v5, 1, v{vI}", "v_lshl_add_u32 v4, v5, 7, v4",
                  f"s_lshl_b32 s{sT0}, s{sJ}, 7", f"s_add_u32 s{sT0}, s{sT0}, s{sK1}", f"s_lshl_b32 s{sT0}, s{sT0}, 12", "s_mov_b64 exec, 0xffff",
                  f"buffer_load_dword v{PD}, v4, {sr(S_SR, 4)}, s{sT0} offen", f"buffer_load_dword v{PD}, v4, {sr(S_SI, 4)}, s{sT0} offen", "s_mov_b64 exec, -1")
            if 2 <= s < 10 and not o.nobx:
                for row in (2 * (s - 2), 2 * (s - 2) + 1):
                    a(f"s_add_u32 s{sT0}, s{sS2}, {128 * row}", f"s_lshl_b32 s{sT0}, s{sT0}, 11", f"s_mov_b32 m0, {L_BX + row * BXROW}",
                      f"buffer_load_dwordx4 v{PB}, {sr(S_BX, 4)}, s{sT0} offen lds", f"buffer_load_dwordx4 v{PB}, {sr(S_BX, 4)}, s{sT0} offen offset:1024 lds")
            if s == 12:
                l = self.lab("rst")
                a.label(l)
                a(f"buffer_load_dword v8, v22, {sr(S_DBG, 4)}, 0 offen{SC}", "s_waitcnt vmcnt(0)", "v_readfirstlane_b32 s{}, v8".format(sT0),
                  f"s_cmp_lt_u32 s{sT0}, 256", f"s_cbranch_scc1 {l}")
            a("s_barrier")

    AQ, AK, AV, AH = 16, 48, 80, 112
    FA, FB = 120, 164
    BO, BC = 208, 214
    SELG, SELS, BIAS = 220, 222, 226
    def compute_setup(self):
        a = self.a
        BO, SELG, SELS, BIAS = self.BO, self.SELG, self.SELS, self.BIAS
        M0 = sr(sT4 + 1, 2)
        a(f"s_lshr_b32 s{sT0}, s{sWAVE}, 1", f"s_and_b32 s{sT1}, s{sWAVE}, 1", f"s_lshl_b32 s{sT2}, s{sT0}, 13", f"s_add_u32 s{sT2}, s{sT2}, 2048")
        a(f"v_lshrrev_b32 v4, 1, v{vI}", f"v_xor_b32 v4, v4, v{vG}", "v_lshlrev_b32 v4, 4, v4", f"v_lshl_add_u32 v{BO + 2}, v{vI}, 7, v4",
          f"v_xor_b32 v{BO + 3}, 64, v{BO + 2}", f"v_add_u32 v{BO}, s{sT2}, v{BO + 2}", f"v_add_u32 v{BO + 1}, s{sT2}, v{BO + 3}")
        a(f"v_lshrrev_b32 v4, 3, v{vI}", f"v_and_b32 v5, 1, v{vG}", "v_lshl_add_u32 v4, v5, 1, v4", f"s_lshl_b32 s{sT3}, s{sT1}, 1",
          f"v_xor_b32 v4, s{sT3}, v4", "v_lshlrev_b32 v4, 5, v4", f"v_and_b32 v5, 3, v{vI}", "v_lshl_add_u32 v4, v5, 3, v4",
          f"v_lshrrev_b32 v5, 2, v{vI}", f"v_lshl_add_u32 v5, v{vG}, 3, v5", "v_lshl_add_u32 v4, v5, 7, v4",
          f"v_add_u32 v{BO + 4}, {XREG}, v4", "v_xor_b32 v4, 32, v4", f"v_add_u32 v{BO + 5}, {XREG}, v4")
        a(f"v_and_b32 v4, 1, v{vI}", f"v_lshl_add_u32 v5, v{vG}, 2, v4", "v_add_u32 v6, 2, v5", "v_lshlrev_b32 v7, 1, v4",
          f"v_cmp_le_u32 {M0}, v5, v{vI}", f"v_cmp_le_u32 vcc, v6, v{vI}", "v_add_u32 v8, 4, v7")
        a(f"v_cndmask_b32 v5, v7, v8, {M0}", "v_cndmask_b32 v6, v7, v8, vcc", f"s_mov_b32 s{sT3}, 0x01010000")
        for k, t in enumerate((5, 6)):
            a(f"v_mul_lo_u32 v{t}, v{t}, s{sT3}", f"v_add_u32 v{SELG + k}, 0x01000c0c, v{t}")
        a("v_lshlrev_b32 v4, 4, v4", "v_mov_b32 v9, 0x0c0c0c0c")
        for k, (pat, m) in enumerate(((0x0c0c0100, M0), (0x0c0c0302, "vcc"))):
            a(f"v_mov_b32 v7, {hex(pat)}", "v_alignbit_b32 v7, v7, v7, v4",
              f"v_cndmask_b32 v{SELS + k}, v7, v9, {m}", f"v_cndmask_b32 v{SELS + 2 + k}, v9, v7, {m}")
        a(f"s_or_b32 s{sT3}, s{sRB}, s{sT0}", f"s_cmp_eq_u32 s{sT3}, 0", f"s_cselect_b32 s{sT3}, {hex(f32bits(-1e9))}, 0", f"v_mov_b32 v7, s{sT3}",
          f"v_cndmask_b32 v{BIAS}, v7, 0, {M0}", f"v_cndmask_b32 v{BIAS + 1}, v7, 0, vcc")
        self.wo_setup()
        for r in range(16, 120): a(f"v_mov_b32 v{r}, 0")

    def a1_reads(self, F, ks):
        BC = self.BC
        xs = [f"ds_read_b128 {vr(F + 4 * (tb + 1), 4)}, v{BC + ks} offset:{tb * 2048}" for tb in range(4)]
        xh = f"ds_read_b128 {vr(F, 4)}, v{BC + 2 + ks}"
        w = lambda seg, b: [f"ds_read_b64_tr_b16 {vr(F + 20 + 8 * seg + 4 * b + 2 * hr, 2)}, v{BC + 4 + b} offset:{seg * 8192 + ks * 4096 + hr * 512}" for hr in range(2)]
        return w(0, 0) + xs + w(0, 1) + w(1, 0) + w(1, 1) + w(2, 0) + w(2, 1) + [xh]

    def a1_mfmas(self, F, th):
        out = []
        X = lambda tb: vr(F + 4 * (tb + 1), 4)
        W = lambda seg, b: vr(F + 20 + 8 * seg + 4 * b, 4)
        for seg, base in ((0, self.AQ), (1, self.AK)):
            for b in range(2):
                for tb in range(4):
                    d = vr(base + 8 * tb + 4 * b, 4)
                    out.append(f"{MF} {d}, {W(seg, b)}, {X(tb)}, {d}")
        for b in range(2):
            for tb in range(4):
                d = vr(self.AV + 8 * tb + 4 * b, 4)
                out.append(f"{MF} {d}, {X(tb)}, {W(2, b)}, {d}")
        for b in range(2):
            d = vr(self.AH + 4 * b, 4)
            out.append(f"{MF} {d}, {W(1, b)}, {vr(F, 4)}, {d}" if th == 0 else f"{MF} {d}, {vr(F, 4)}, {W(2, b)}, {d}")
        return out

    def compute_loop(self, th):
        a = self.a
        BO, BC, FA, FB = self.BO, self.BC, self.FA, self.FB
        rot = lambda idx: [f"v_add_u32 v{BC + k}, s{sSLOT}, v{BO + k}" for k in idx]
        a(f"s_mov_b32 s{sSLOT}, 0", *rot(range(6)))
        a("s_barrier")
        self.stamp(2); self.stamp(10, True)
        a(*self.a1_reads(FA, 0))
        a(f"s_mov_b32 s{sCNT}, 0", "s_waitcnt lgkmcnt(0)")
        l = self.lab("qkv")
        a(".p2align 6")
        a.label(l)
        nxt = [f"s_add_u32 s{sSLOT}, s{sSLOT}, {SLOT}", f"s_cmp_eq_u32 s{sSLOT}, {3 * SLOT}", f"s_cselect_b32 s{sSLOT}, 0, s{sSLOT}"]
        if self.o.iterstamp: a("s_memrealtime s[98:99]", "s_memtime s[100:101]")
        a(*interleave(self.a1_mfmas(FA, th), self.a1_reads(FB, 1) + [nxt] + rot(range(6))))
        if self.o.iterstamp: a("s_waitcnt lgkmcnt(0)", f"s_mov_b32 m0, s{sCNT}", "s_nop 0", "v_writelane_b32 v254, s98, m0", "v_writelane_b32 v253, s100, m0")
        a("s_waitcnt lgkmcnt(0)", "s_barrier")
        a(*interleave(self.a1_mfmas(FB, th), self.a1_reads(FA, 0) + [[f"s_add_u32 s{sCNT}, s{sCNT}, 1", f"s_cmp_lt_u32 s{sCNT}, 16"]]))
        a("s_waitcnt lgkmcnt(0)", f"s_cbranch_scc1 {l}")
        self.stamp(3); self.stamp(11, True)

    def attention(self, th):
        a = self.a
        AQ, AK, AV, AH, SELG, SELS, BIAS = self.AQ, self.AK, self.AV, self.AH, self.SELG, self.SELS, self.BIAS
        QP, KP, VP, PO, S, O, OP, T = 120, 136, 156, 176, 16, 48, 80, 192
        a(f"s_and_b32 s{sT1}, s{sWAVE}, 1", f"s_mul_i32 s{sT1}, s{sT1}, 3072", f"s_add_u32 s{sT1}, s{sT1}, {L_E}",
          f"v_lshlrev_b32 v15, 4, v{vLANE}", f"v_add_u32 v14, s{sT1}, v15")
        if th == 0:
            for n in range(4): a(cvt(KP + 16 + n, AK + 24 + 2 * n))
            a(f"ds_write_b128 v14, {vr(KP + 16, 4)}")
            for b in range(2):
                a(cvt(VP + 10 * b + 8, AV + 24 + 4 * b), cvt(VP + 10 * b + 9, AV + 26 + 4 * b))
                a(f"ds_write_b64 v14, {vr(VP + 10 * b + 8, 2)} offset:{1024 + 8 * b}")
            for n in range(4): a(cvt(KP + n, AH + 2 * n))
            last = 3
        else:
            for n in range(4): a(cvt(T + n, AH + 2 * n))
            a(f"ds_write_b128 v14, {vr(T, 4)} offset:2048")
            last = 4
        self.b1_consts()
        for tb in range(4):
            for n in range(4): a(cvt(QP + 4 * tb + n, AQ + 8 * tb + 2 * n))
        a("s_waitcnt lgkmcnt(0)", "s_barrier")
        if th == 0:
            for b in range(2): a(f"ds_read_b64 {vr(VP + 10 * b, 2)}, v14 offset:{2048 + 8 * b}")
        else:
            a(f"ds_read_b128 {vr(KP, 4)}, v14")
            for b in range(2): a(f"ds_read_b64 {vr(VP + 10 * b, 2)}, v14 offset:{1024 + 8 * b}")
        for tb in range(last):
            for n in range(4): a(cvt(KP + 4 + 4 * tb + n, AK + 8 * tb + 2 * n))
        for tb in range(last):
            for b in range(2):
                a(cvt(VP + 10 * b + 2 + 2 * tb, AV + 8 * tb + 4 * b), cvt(VP + 10 * b + 3 + 2 * tb, AV + 8 * tb + 4 * b + 2))
        a("s_waitcnt lgkmcnt(0)")
        order = (3, 2, 1, 0)
        for qb in order:
            a(f"{MF} {vr(S + 8 * qb + 4, 4)}, {vr(KP + 4 + 4 * qb, 4)}, {vr(QP + 4 * qb, 4)}, 0",
              f"{MF} {vr(S + 8 * qb, 4)}, {vr(KP + 4 * qb, 4)}, {vr(QP + 4 * qb, 4)}, 0")
        a(f"s_mov_b32 s{sT2}, {hex(f32bits(32 ** -0.5))}", f"s_mov_b32 s{sT3}, {hex(f32bits(1.4426950408889634))}")
        Z, M, U = T, T + 8, T + 12
        for qb in order:
            for n in range(4): a(cvt(PO + 4 * qb + n, S + 8 * qb + 2 * n))
        for qb in order:
            for k in range(2): a(f"v_perm_b32 v{Z + 2 * qb + k}, v{PO + 4 * qb + 2 + k}, v{PO + 4 * qb + k}, v{SELG + k}")
        for qb in order:
            for k in range(2):
                z = Z + 2 * qb + k
                a(f"v_fma_f32 v{z}, v{z}, s{sT2}, v{BIAS + k}" if qb == 0 else f"v_mul_f32 v{z}, s{sT2}, v{z}")
        for qb in order: a(cvt(M + qb, Z + 2 * qb))
        for qb in order: a(f"v_lshlrev_b32 v{Z + 2 * qb}, 16, v{M + qb}", f"v_and_b32 v{Z + 2 * qb + 1}, 0xffff0000, v{M + qb}")
        def allreduce(op):
            for sw in ("v_permlane16_swap_b32", "v_permlane32_swap_b32"):
                for qb in order: a(f"v_mov_b32 v{U + qb}, v{M + qb}")
                for qb in order: a(f"{sw} v{M + qb}, v{U + qb}")
                for qb in order: a(f"{op} v{M + qb}, v{M + qb}, v{U + qb}")
        for qb in order: a(f"v_max_f32 v{M + qb}, v{Z + 2 * qb}, v{Z + 2 * qb + 1}")
        allreduce("v_max_f32")
        for qb in order:
            for k in range(2): a(f"v_sub_f32 v{Z + 2 * qb + k}, v{Z + 2 * qb + k}, v{M + qb}")
        for n in range(7, -1, -1): a(f"v_mul_f32 v{Z + n}, s{sT3}, v{Z + n}")
        for n in range(7, -1, -1): a(f"v_exp_f32 v{Z + n}, v{Z + n}")
        for qb in order: a(f"v_add_f32 v{M + qb}, v{Z + 2 * qb}, v{Z + 2 * qb + 1}")
        allreduce("v_add_f32")
        for qb in order: a(f"v_rcp_f32 v{M + qb}, v{M + qb}")
        for qb in order:
            for k in range(2): a(f"v_mul_f32 v{Z + 2 * qb + k}, v{Z + 2 * qb + k}, v{M + qb}")
        for qb in order: a(cvt(M + qb, Z + 2 * qb))
        for qb in order:
            for n in range(4): a(f"v_perm_b32 v{PO + 4 * qb + n}, v{M + qb}, v{M + qb}, v{SELS + n}")
        a(f"s_lshl_b32 s{sT0}, s{sRB}, 3", f"s_add_u32 s{sT0}, s{sT0}, {4 * th}", f"s_lshl_b32 s{sT0}, s{sT0}, 5", f"s_lshl_b32 s{sT1}, s{sHG}, 1",
          f"s_add_u32 s{sT0}, s{sT0}, s{sT1}", f"s_and_b32 s{sT1}, s{sWAVE}, 1", f"s_add_u32 s{sT0}, s{sT0}, s{sT1}", f"s_lshl_b32 s{sT0}, s{sT0}, 10")
        for qb in order:
            for b in range(2):
                a(f"{MF} {vr(O + 8 * qb + 4 * b, 4)}, {vr(VP + 10 * b + 2 * qb, 4)}, {vr(PO + 4 * qb, 4)}, 0")
        for qb in order:
            for n in range(4): a(cvt(OP + 4 * qb + n, O + 8 * qb + 2 * n))
            a(f"s_add_u32 s{sT1}, s{sT0}, {WS_O + qb * 32768}", f"buffer_store_dwordx4 {vr(OP + 4 * qb, 4)}, v15, {sr(S_WS, 4)}, s{sT1} offen{SC}")
        self.stamp(4)

    F1R, F1I, C2, S2, NS2, GRE, GIM = 208, 212, 216, 228, 232, 236, 240
    TC, TS = 96, 104
    def b1_consts(self):
        a = self.a
        a(f"v_lshlrev_b32 v5, 16, v{vI}", f"v_lshl_add_u32 v6, v{vG}, 4, v5", f"v_lshl_add_u32 v7, v{vG}, 3, v5",
          f"v_lshlrev_b32 v8, 17, v{vI}", f"v_lshl_add_u32 v8, v{vG}, 3, v8", f"s_lshl_b32 s{sT0}, s{sHF}, 20")
        a(f"buffer_load_dwordx4 {vr(self.F1R, 4)}, v6, {sr(S_HR, 4)}, s{sT0} offen", f"buffer_load_dwordx4 {vr(self.F1I, 4)}, v6, {sr(S_HI, 4)}, s{sT0} offen",
          f"buffer_load_dwordx2 {vr(self.C2, 2)}, v7, {sr(S_HR, 4)}, 0 offen", f"buffer_load_dwordx2 {vr(self.C2 + 2, 2)}, v7, {sr(S_HR, 4)}, 0 offen offset:32",
          f"buffer_load_dwordx2 {vr(self.NS2, 2)}, v7, {sr(S_HI, 4)}, 0 offen", f"buffer_load_dwordx2 {vr(self.NS2 + 2, 2)}, v7, {sr(S_HI, 4)}, 0 offen offset:32",
          f"buffer_load_dwordx2 {vr(self.GRE, 2)}, v8, {sr(S_HR, 4)}, 0 offen", f"buffer_load_dwordx2 {vr(self.GIM, 2)}, v8, {sr(S_HI, 4)}, 0 offen")

    def b1_twiddles(self):
        a = self.a
        a(f"s_lshl_b32 s{sT0}, s{sHF}, 4", f"v_add_u32 v4, s{sT0}, v{vI}", "v_cvt_f32_u32 v4, v4", "v_mul_f32 v4, 0x3a800000, v4",
          f"v_lshlrev_b32 v5, 2, v{vG}", "v_cvt_f32_u32 v5, v5", "v_mul_f32 v5, v5, v4")
        for n in range(8):
            a(f"s_mov_b32 s{sT1}, {hex(f32bits(16.0 * (n >> 2) + (n & 3)))}", f"v_fma_f32 v6, v4, s{sT1}, v5",
              f"v_cos_f32 v{self.TC + n}, v6", f"v_sin_f32 v{self.TS + n}, v6")

    def b1_first(self, younger):
        a = self.a
        F1R, F1I, C2, S2, NS2, GRE, GIM, TC, TS = self.F1R, self.F1I, self.C2, self.S2, self.NS2, self.GRE, self.GIM, self.TC, self.TS
        XF, ACC, T, BR, V2, XA, PK, ALT, ZERO = 16, 32, 64, 112, 128, 144, 152, 164, 168
        aRD, aWR = 9, 11
        a(f"s_mul_i32 s{sT2}, s{sWAVE}, {2 * BXROW}", f"s_add_u32 s{sT2}, s{sT2}, {L_BX}",
          f"v_lshrrev_b32 v4, 2, v{vI}", f"v_lshl_add_u32 v4, v{vG}, 3, v4", "v_lshlrev_b32 v4, 6, v4",
          f"v_and_b32 v5, 3, v{vI}", "v_lshl_add_u32 v4, v5, 3, v4", f"v_and_b32 v6, 1, v{vG}", "v_lshl_add_u32 v4, v6, 5, v4",
          f"v_add_u32 v{aRD}, s{sT2}, v4", "v_xor_b32 v4, 32, v4", f"v_add_u32 v{aRD + 1}, s{sT2}, v4")
        for row in range(2):
            for dh in range(2):
                for hr in range(2):
                    a(f"ds_read_b64_tr_b16 {vr(XF + 8 * row + 4 * dh + 2 * hr, 2)}, v{aRD + dh} offset:{row * BXROW + hr * 256}")
        a(f"v_lshrrev_b32 v4, 1, v{vI}", f"v_xor_b32 v4, v4, v{vG}", "v_lshlrev_b32 v4, 3, v4", f"v_lshl_add_u32 v4, v{vI}, 6, v4",
          "v_xor_b32 v5, 32, v4", f"s_and_b32 s{sT3}, s{sWAVE}, 3", f"s_lshl_b32 s{sT3}, s{sT3}, 6")
        for row in range(2):
            for c in range(2):
                d = aWR + 2 * row + c
                a(f"v_add_u32 v{d}, s{sT3}, v{4 + c}", f"v_and_b32 v{d}, 1023, v{d}", f"v_add_u32 v{d}, s{sT2}, v{d}")
            if row == 0: a(f"s_add_u32 s{sT4}, s{sT3}, s{sT2}", f"v_lshl_add_u32 v8, v{vG}, 3, s{sT4}", f"s_add_u32 s{sT3}, s{sT3}, 32")
        for k in range(4): a(f"v_mov_b32 v{ALT + k}, 0xbf803f80")
        a(f"v_mov_b32 v{ZERO}, 0", f"v_mov_b32 v{ZERO + 1}, 0")
        a(f"s_waitcnt vmcnt({younger}) lgkmcnt(0)")
        for row in range(2):
            for dh in range(2):
                for c, F in enumerate((F1R, F1I)):
                    a(f"{MF} {vr(ACC + 16 * row + 8 * c + 4 * dh, 4)}, {vr(XF + 8 * row + 4 * dh, 4)}, {vr(F, 4)}, 0")
        for k in range(4): a(f"v_xor_b32 v{S2 + k}, 0x80008000, v{NS2 + k}")
        a(f"v_xor_b32 v{GRE + 2}, 0x80008000, v{GIM}", f"v_xor_b32 v{GRE + 3}, 0x80008000, v{GIM + 1}",
          f"v_xor_b32 v{GIM + 2}, 0x80008000, v{GRE}", f"v_xor_b32 v{GIM + 3}, 0x80008000, v{GRE + 1}",
          f"v_mov_b32 v{GIM}, v{GRE + 2}", f"v_mov_b32 v{GIM + 1}, v{GRE + 3}")
        for row in range(2):
            re, im = ACC + 16 * row, ACC + 16 * row + 8
            for n in range(8):
                a(f"v_mul_f32 v{T + n}, v{re + n}, v{TC + n}", f"v_mul_f32 v{T + 8 + n}, v{im + n}, v{TC + n}")
            for n in range(8):
                a(f"v_fma_f32 v{T + n}, v{im + n}, v{TS + n}, v{T + n}", f"v_fma_f32 v{T + 8 + n}, -v{re + n}, v{TS + n}, v{T + 8 + n}")
            for n in range(8): a(cvt(BR + 8 * row + n, T + 2 * n))
            br, bi, vre, vim = BR + 8 * row, BR + 8 * row + 4, V2 + 8 * row, V2 + 8 * row + 4
            a(f"{MF} {vr(vre, 4)}, {vr(br, 4)}, {vr(C2, 4)}, 0", f"{MF} {vr(vim, 4)}, {vr(bi, 4)}, {vr(C2, 4)}, 0",
              f"{MF} {vr(XA + 4 * row, 4)}, {vr(br, 4)}, {vr(ALT, 4)}, 0",
              f"{MF} {vr(vre, 4)}, {vr(bi, 4)}, {vr(S2, 4)}, {vr(vre, 4)}", f"{MF} {vr(vim, 4)}, {vr(br, 4)}, {vr(NS2, 4)}, {vr(vim, 4)}")
        for row in range(2):
            for n in range(4): a(cvt(PK + 4 * row + n, V2 + 8 * row + 2 * n))
            a(cvt(XA + 4 * row, XA + 4 * row), cvt(XA + 4 * row + 1, XA + 4 * row + 2))
            a(f"ds_write_b64 v{aWR + 2 * row}, {vr(PK + 4 * row, 2)} offset:{row * BXROW}", f"ds_write_b64 v{aWR + 2 * row + 1}, {vr(PK + 4 * row + 2, 2)} offset:{row * BXROW}",
              f"ds_write_b64 v8, {vr(XA + 4 * row, 2)} offset:{row * (BXROW + 32) + 1024}", f"ds_write_b64 v8, {vr(ZERO, 2)} offset:{row * (BXROW + 32) + 1280}")

    def b1_second_setup(self):
        a = self.a
        a(f"v_lshrrev_b32 v4, 2, v{vI}", f"v_lshl_add_u32 v4, v{vG}, 2, v4", "v_and_b32 v6, 7, v4", "v_lshlrev_b32 v6, 5, v6",
          "v_lshlrev_b32 v4, 11, v4", f"v_add_u32 v4, {L_BX}, v4", f"v_and_b32 v5, 3, v{vI}", "v_lshl_add_u32 v7, v5, 3, v6", "v_add_u32 v8, v4, v7",
          f"v_xor_b32 v5, s{sWAVE}, v5", f"s_lshl_b32 s{sT3}, s{sWAVE}, 7", "v_lshlrev_b32 v5, 3, v5", f"v_add_u32 v6, s{sT3}, v6")
        for ee in range(2):
            for hr in range(2):
                d = 10 + 2 * ee + hr
                a(f"v_xor_b32 v7, {32 * hr}, v5", "v_add_u32 v7, v7, v6", f"v_add_u32 v7, {64 * ee}, v7", "v_and_b32 v7, 1023, v7", f"v_add_u32 v{d}, v4, v7")
        a(f"v_lshlrev_b32 v4, 18, v{vI}", f"v_lshl_add_u32 v9, v{vG}, 4, v4",
          f"s_lshl_b32 s{sT4}, s{sWAVE}, 15", f"s_lshl_b32 s{sT5}, s{sS2}, 7", f"s_add_u32 s{sT4}, s{sT4}, s{sT5}",
          f"s_lshl_b32 s{sT5}, s{sHF}, 6", f"s_add_u32 s{sT4}, s{sT4}, s{sT5}", f"s_add_u32 s{sT4}, s{sT4}, {WS_V}",
          f"s_add_u32 s{sT5}, s{sT4}, 16384")

    def b1_second(self):
        a = self.a
        DF, D3, PK, GRE, GIM = 16, 28, 52, self.GRE, self.GIM
        l = self.lab("b1")
        for ee in range(2):
            for hr in range(2): a(f"ds_read_b64_tr_b16 {vr(DF + 4 * ee + 2 * hr, 2)}, v{10 + 2 * ee + hr}")
        a(f"ds_read_b64_tr_b16 {vr(DF + 8, 2)}, v8 offset:1024", f"ds_read_b64_tr_b16 {vr(DF + 10, 2)}, v8 offset:1280")
        self.b2_issue_m()
        a("s_waitcnt lgkmcnt(0)")
        for ee in range(3):
            a(f"{MF} {vr(D3 + 8 * ee, 4)}, {vr(DF + 4 * ee, 4)}, {vr(GRE, 4)}, 0", f"{MF} {vr(D3 + 8 * ee + 4, 4)}, {vr(DF + 4 * ee, 4)}, {vr(GIM, 4)}, 0")
        self.a2_setup()
        for ee in range(3):
            for n in range(4): a(cvt(PK + 4 * ee + n, D3 + 8 * ee + 2 * n))
        a(f"s_bitcmp1_b32 s{sS2}, 3", f"s_cbranch_scc0 {l}_ns")
        for ee in range(2):
            a(f"v_swap_b32 v{PK + 4 * ee}, v{PK + 4 * ee + 2}", f"v_swap_b32 v{PK + 4 * ee + 1}, v{PK + 4 * ee + 3}")
        a.label(l + "_ns")
        a(f"buffer_store_dwordx4 {vr(PK, 4)}, v9, {sr(S_WS, 4)}, s{sT4} offen{SC}", f"buffer_store_dwordx4 {vr(PK + 4, 4)}, v9, {sr(S_WS, 4)}, s{sT5} offen{SC}")
        a(f"s_or_b32 s{sT0}, s{sWAVE}, s{sHF}", f"s_cmp_lg_u32 s{sT0}, 0", f"s_cbranch_scc1 {l}_nx")
        a(f"v_lshlrev_b32 v4, 11, v{vI}", f"s_lshl_b32 s{sT0}, s{sS2}, 4", f"s_add_u32 s{sT0}, s{sT0}, {WS_X}", "s_mov_b64 exec, 0xffff",
          f"buffer_store_dwordx4 {vr(PK + 8, 4)}, v4, {sr(S_WS, 4)}, s{sT0} offen{SC}", "s_mov_b64 exec, -1")
        a.label(l + "_nx")

    def set_flag(self, off_sgpr_code):
        a = self.a
        l = self.lab("fl")
        a(f"s_cmp_lg_u32 s{sWAVE}, 7", f"s_cbranch_scc1 {l}", *off_sgpr_code, "v_mov_b32 v4, 0", "v_mov_b32 v5, 1", "s_mov_b64 exec, 1",
          f"buffer_store_dword v5, v4, {sr(S_WS, 4)}, s{sT0} offen{SC}", "s_mov_b64 exec, -1")
        a.label(l)

    OF, A2ACC, WF, B2M, B2V, A2B, vL16, FLG = 16, 80, 112, 144, 176, 188, 192, 196
    RING = 8
    def b2_issue_m(self):
        a = self.a
        a(f"s_lshl_b32 s{sT0}, s{sWAVE}, 8", f"s_add_u32 s{sT0}, s{sT0}, s{sK1}", f"s_lshl_b32 s{sT0}, s{sT0}, 12",
          f"v_lshlrev_b32 v5, 16, v{vI}", f"v_lshl_add_u32 v5, v{vG}, 4, v5")
        for ks in range(8):
            a(f"buffer_load_dwordx4 {vr(self.B2M + 4 * ks, 4)}, v5, {sr(S_SR if ks < 4 else S_SI, 4)}, s{sT0} offen offset:{(ks & 3) * 64}")

    def a2_setup(self):
        a, B = self.a, self.A2B
        a(f"v_lshrrev_b32 v4, 3, v{vI}", f"v_and_b32 v5, 1, v{vG}", "v_lshl_add_u32 v4, v5, 1, v4", "v_lshlrev_b32 v4, 5, v4",
          f"v_and_b32 v5, 3, v{vI}", "v_lshl_add_u32 v4, v5, 3, v4", f"v_lshrrev_b32 v5, 2, v{vI}", f"v_lshl_add_u32 v5, v{vG}, 2, v5",
          "v_lshl_add_u32 v4, v5, 7, v4", f"s_lshr_b32 s{sT1}, s{sWAVE}, 2", f"s_lshl_b32 s{sT2}, s{sT1}, 16", f"v_add_u32 v{B}, s{sT2}, v4")
        for u in range(1, 4): a(f"v_xor_b32 v{B + u}, {32 * u}, v{B}")
        a(f"s_and_b32 s{sT0}, s{sWAVE}, 3", f"s_lshl_b32 s{sT0}, s{sT0}, 1", f"s_lshl_b32 s{sT2}, s{sRB2}, 3", f"s_add_u32 s{sT0}, s{sT0}, s{sT2}",
          f"s_lshl_b32 s{sT0}, s{sT0}, 15", f"s_lshl_b32 s{sT1}, s{sT1}, 14", f"s_add_u32 s{sOB}, s{sT0}, s{sT1}",
          f"v_lshlrev_b32 v{self.vL16}, 4, v{vLANE}", f"v_add_u32 v{self.vL16 + 1}, 0x8000, v{self.vL16}", f"s_mov_b32 s{sKS}, s{sROT2}")

    def o_load(self, h):
        r = self.OF + 8 * (h % self.RING)
        return [f"s_lshl_b32 s{sT6}, s{sKS}, 10", f"s_add_u32 s{sT6}, s{sT6}, s{sOB}", f"s_add_u32 s{sKS}, s{sKS}, 1", f"s_and_b32 s{sKS}, s{sKS}, 15",
                f"buffer_load_dwordx4 {vr(r, 4)}, v{self.vL16}, {sr(S_WS, 4)}, s{sT6} offen{SC}",
                f"buffer_load_dwordx4 {vr(r + 4, 4)}, v{self.vL16 + 1}, {sr(S_WS, 4)}, s{sT6} offen{SC}"]

    def poll_a(self):
        a = self.a
        l = self.lab("pa")
        a(f"v_lshlrev_b32 v4, 2, v{vI}", f"s_lshl_b32 s{sT0}, s{sRB2}, 7", f"s_add_u32 s{sT0}, s{sT0}, {WS_FA}")
        a.label(l)
        a(f"buffer_load_dword v5, v4, {sr(S_WS, 4)}, s{sT0} offen{SC}", "s_waitcnt vmcnt(0)", "v_cmp_ne_u32 vcc, 1, v5", "s_cmp_lg_u64 vcc, 0", f"s_cbranch_scc1 {l}")

    def a2_compute(self):
        a = self.a
        OF, ACC, WF, B, FLG, PRE = self.OF, self.A2ACC, self.WF, self.A2B, self.FLG, self.o.opre
        rd = lambda h: [f"ds_read_b64_tr_b16 {vr(WF + 16 * (h & 1) + 4 * u + 2 * hr, 2)}, v{B + u} offset:{h * 4096 + hr * 2048}" for u in range(4) for hr in range(2)]
        queue = []
        for h in range(PRE):
            a(*self.o_load(h)); queue += [("o", h)] * 2
        a(*rd(0))
        FB_ISSUE, FB_CHECK = self.o.fbi, self.o.fbc
        def wait_for(tag):
            if tag not in queue: return 63
            last = max(k for k, q in enumerate(queue) if q == tag)
            n = len(queue) - 1 - last
            del queue[:last + 1]
            return n
        for h in range(16):
            a(f"s_waitcnt vmcnt({wait_for(('o', h))}) lgkmcnt(0)")
            if h == 6: a("s_barrier")
            mm = []
            for u in range(4):
                for t in range(2):
                    d = vr(ACC + 16 * t + 4 * u, 4)
                    mm.append(f"{MF} {d}, {vr(WF + 16 * (h & 1) + 4 * u, 4)}, {vr(OF + 8 * (h % self.RING) + 4 * t, 4)}, {d if h else 0}")
            fill = rd(h + 1) if h < 15 else []
            body = interleave(mm, fill)
            if h + PRE < 16:
                ld = self.o_load(h + PRE); queue += [("o", h + PRE)] * 2
                body = body[:2] + ld[:5] + body[2:8] + ld[5:] + body[8:]
            a(*body)
            if h == FB_ISSUE:
                a(f"s_mov_b32 s{sT7}, {WS_FB}", f"buffer_load_dwordx4 {vr(FLG, 4)}, v{self.vL16}, {sr(S_WS, 4)}, s{sT7} offen{SC}"); queue.append(("f", 0))
            if h == FB_CHECK:
                l = self.lab("pb")
                a(f"s_waitcnt vmcnt({wait_for(('f', 0))})", f"s_branch {l}_chk")
                a.label(l)
                a(f"buffer_load_dwordx4 {vr(FLG, 4)}, v{self.vL16}, {sr(S_WS, 4)}, s{sT7} offen{SC}", "s_waitcnt vmcnt(0)")
                a.label(l + "_chk")
                a(f"v_and_b32 v{FLG}, v{FLG}, v{FLG + 1}", f"v_and_b32 v{FLG + 2}, v{FLG + 2}, v{FLG + 3}", f"v_and_b32 v{FLG}, v{FLG}, v{FLG + 2}",
                  f"v_cmp_ne_u32 vcc, 1, v{FLG}", "s_cmp_lg_u64 vcc, 0", f"s_cbranch_scc1 {l}")
                self.stamp(9)
                self.b2_issue_v(); queue += [("v", 0)] * 3

    def b2_issue_v(self):
        a = self.a
        a(f"s_lshl_b32 s{sT0}, s{sK1}, 4", f"s_add_u32 s{sT0}, s{sT0}, s{sJ}", f"s_lshl_b32 s{sT0}, s{sT0}, 14", f"s_lshl_b32 s{sT1}, s{sWAVE}, 11",
          f"s_add_u32 s{sT0}, s{sT0}, s{sT1}", f"s_add_u32 s{sT0}, s{sT0}, {WS_V}",
          f"s_lshl_b32 s{sT1}, s{sK1}, 11", f"s_lshl_b32 s{sT2}, s{sWAVE}, 8", f"s_add_u32 s{sT1}, s{sT1}, s{sT2}", f"s_add_u32 s{sT1}, s{sT1}, {WS_X}",
          f"v_lshlrev_b32 v4, 4, v{vI}")
        a(f"buffer_load_dwordx4 {vr(self.B2V, 4)}, v{self.vL16}, {sr(S_WS, 4)}, s{sT0} offen{SC}",
          f"buffer_load_dwordx4 {vr(self.B2V + 4, 4)}, v{self.vL16}, {sr(S_WS, 4)}, s{sT0} offen offset:1024{SC}",
          f"buffer_load_dwordx4 {vr(self.B2V + 8, 4)}, v4, {sr(S_WS, 4)}, s{sT1} offen{SC}")

    def finish(self):
        a = self.a
        ACC, R, P, L16 = self.A2ACC, 16, 32, self.vL16
        l = self.lab("fin")
        a(f"s_and_b32 s{sT0}, s{sWAVE}, 3", f"s_lshl_b32 s{sT0}, s{sT0}, 12", f"s_lshr_b32 s{sT1}, s{sWAVE}, 2", f"s_lshl_b32 s{sT2}, s{sT1}, 16",
          f"s_add_u32 s{sT0}, s{sT0}, s{sT2}", f"v_add_u32 v4, s{sT0}, v{L16}", "v_xor_b32 v5, 0x10000, v4")
        a(f"v_and_b32 v6, 1, v{vG}", f"v_xor_b32 v6, v6, v{vLANE}", "v_lshlrev_b32 v6, 4, v6", f"s_lshl_b32 s{sT0}, s{sWAVE}, 11",
          f"s_add_u32 s{sT0}, s{sT0}, {L_VB}", f"v_add_u32 v6, s{sT0}, v6", f"s_lshl_b32 s{sT0}, s{sWAVE}, 8", f"s_add_u32 s{sT0}, s{sT0}, {L_XB}",
          f"v_lshl_add_u32 v7, v{vI}, 4, s{sT0}")
        a(f"s_cmp_eq_u32 s{sT1}, 0", f"s_cbranch_scc1 {l}_k0")
        for n in range(16): a(f"v_swap_b32 v{ACC + n}, v{ACC + 16 + n}")
        a.label(l + "_k0")
        for u in range(4): a(f"ds_write_b128 v4, {vr(ACC + 16 + 4 * u, 4)} offset:{u * 1024}")
        a("s_waitcnt vmcnt(0)")
        a(f"ds_write_b128 v6, {vr(self.B2V, 4)}", f"ds_write_b128 v6, {vr(self.B2V + 4, 4)} offset:1024", f"ds_write_b128 v7, {vr(self.B2V + 8, 4)}")
        a(f"s_and_b32 s{sT0}, s{sWAVE}, 3", f"s_lshl_b32 s{sT0}, s{sT0}, 1", f"s_add_u32 s{sT0}, s{sT0}, s{sT1}",
          f"s_lshl_b32 s{sT2}, s{sRB2}, 3", f"s_add_u32 s{sT0}, s{sT0}, s{sT2}", f"s_lshl_b32 s{sT0}, s{sT0}, 16", f"s_lshl_b32 s{sT2}, s{sCB}, 7",
          f"s_add_u32 s{sT7}, s{sT0}, s{sT2}",
          f"v_and_b32 v8, 1, v{vG}", "v_lshlrev_b32 v8, 5, v8", f"v_lshrrev_b32 v9, 1, v{vG}", "v_lshl_add_u32 v8, v9, 4, v8",
          f"v_lshl_add_u32 v8, v{vI}, 12, v8")
        B = 100 + 12
        a(f"v_lshrrev_b32 v10, 2, v{vI}", f"v_lshl_add_u32 v10, v{vG}, 3, v10", f"v_and_b32 v11, 3, v{vI}", "v_lshlrev_b32 v12, 4, v10",
          f"v_add_u32 v{B + 4}, {L_XB}, v12", "v_lshlrev_b32 v10, 7, v10", "v_lshl_add_u32 v10, v11, 5, v10",
          f"v_lshrrev_b32 v11, 3, v{vI}", "v_lshl_add_u32 v10, v11, 4, v10", f"v_and_b32 v11, 1, v{vG}", "v_lshl_add_u32 v10, v11, 3, v10",
          f"v_add_u32 v{B}, {L_VB}, v10", f"v_xor_b32 v{B + 1}, 8, v{B}", f"v_xor_b32 v{B + 2}, 16, v{B}", f"v_xor_b32 v{B + 3}, 24, v{B}")
        a("s_waitcnt lgkmcnt(0)", "s_barrier")
        self.stamp(8)
        for u in range(4): a(f"ds_read_b128 {vr(R + 4 * u, 4)}, v5 offset:{u * 1024}")
        for u in range(4):
            a(f"s_waitcnt lgkmcnt({3 - u})")
            for r in range(4): a(f"v_add_f32 v{R + 4 * u + r}, v{R + 4 * u + r}, v{ACC + 4 * u + r}")
        for n in range(8): a(cvt(P + n, R + 2 * n))
        for pr in range(2):
            p = P + 4 * pr
            a(f"v_permlane16_swap_b32 v{p}, v{p + 2}", f"v_permlane16_swap_b32 v{p + 1}, v{p + 3}")
        for pr in range(2):
            a(f"buffer_store_dwordx4 {vr(P + 4 * pr, 4)}, v8, {sr(S_OUT, 4)}, s{sT7} offen offset:{64 * pr}")
        self.b2_compute(B)

    def b2_compute(self, B):
        a = self.a
        M, D, ACC, P = self.B2M, 40, 120, 128
        l = self.lab("b2")
        for ks in range(8):
            for b in range(2):
                for hr in range(2):
                    a(f"ds_read_b64_tr_b16 {vr(D + 8 * ks + 4 * b + 2 * hr, 2)}, v{B + 2 * b + (ks >> 2)} offset:{(ks & 3) * 4096 + hr * 512}")
            if ks == 2:
                a(f"s_lshl_b32 s{sT0}, s{sWAVE}, 8", f"s_add_u32 s{sT0}, s{sT0}, s{sK1}", f"v_lshl_add_u32 v4, v{vI}, 4, s{sT0}",
                  "v_sub_u32 v5, 2048, v4", "v_and_b32 v5, 2047, v5", "v_lshlrev_b32 v4, 12, v4", "v_lshlrev_b32 v5, 12, v5",
                  f"v_lshlrev_b32 v6, 4, v{vG}", "v_add_u32 v7, v4, v6", "v_sub_u32 v5, v5, v6", f"s_lshl_b32 s{sT0}, s{sJ}, 6",
                  f"s_add_u32 s{sT1}, s{sT0}, 2048", f"s_sub_u32 s{sT2}, {4096 - 14}, s{sT0}", f"v_add_u32 v5, s{sT2}, v5")
            if ks >= 3:
                k = ks - 3
                a("s_waitcnt lgkmcnt(12)")
                for b in range(2):
                    d = vr(ACC + 4 * b, 4)
                    a(f"{MF} {d}, {vr(D + 8 * k + 4 * b, 4)}, {vr(M + 4 * k, 4)}, {d if k else 0}")
        for k in range(5, 8):
            a(f"s_waitcnt lgkmcnt({4 * (7 - k)})")
            for b in range(2):
                d = vr(ACC + 4 * b, 4)
                a(f"{MF} {d}, {vr(D + 8 * k + 4 * b, 4)}, {vr(M + 4 * k, 4)}, {d}")
        for n in range(4): a(cvt(P + n, ACC + 2 * n))
        for n in range(4): a(cvt(P + 4 + n, ACC + 7 - 2 * n, ACC + 6 - 2 * n))
        a(f"buffer_store_dwordx4 {vr(P, 4)}, v7, {sr(S_OUT, 4)}, s{sT1} offen")
        a(f"s_cmp_eq_u32 s{sJ}, 0", f"s_cbranch_scc1 {l}_j0")
        a(f"buffer_store_dwordx4 {vr(P + 4, 4)}, v5, {sr(S_OUT, 4)}, 0 offen", f"s_branch {l}_jx")
        a.label(l + "_j0")
        a(f"buffer_store_dwordx3 {vr(P + 4, 3)}, v5, {sr(S_OUT, 4)}, 0 offen", f"buffer_store_short v{P + 7}, v5, {sr(S_OUT, 4)}, 0 offen offset:12",
          "s_mov_b32 exec_lo, 0xffff0000", f"buffer_store_short_d16_hi v{P + 7}, v5, {sr(S_OUT, 4)}, 0 offen offset:14", "s_mov_b32 exec_lo, -1")
        a.label(l + "_jx")
        a(f"s_cmp_lg_u32 s{sJ}, 15", f"s_cbranch_scc1 {l}_nx")
        for ks in range(8):
            for hr in range(2):
                a(f"ds_read_b64_tr_b16 {vr(D + 4 * ks + 2 * hr, 2)}, v{B + 4} offset:{(ks & 3) * 512 + hr * 64 + (ks >> 2) * 8}")
        a("s_waitcnt lgkmcnt(0)")
        for ks in range(8):
            d = vr(ACC, 4)
            a(f"{MF} {d}, {vr(D + 4 * ks, 4)}, {vr(M + 4 * ks, 4)}, {d if ks else 0}")
        a(cvt(ACC + 4, ACC, ACC), "s_mov_b64 exec, 0xffff",
          f"buffer_store_short v{ACC + 4}, v4, {sr(S_OUT, 4)}, 0 offen offset:3072", "s_mov_b64 exec, -1")
        a.label(l + "_nx")

    def kernel(self):
        a = self.a
        self.prologue()
        a(f"s_cmp_eq_u32 s{sWAVE}, 7", "s_cbranch_scc1 L_pf", f"s_cmp_ge_u32 s{sWAVE}, 4", "s_cbranch_scc1 L_ld")
        self.compute_setup()
        a(f"s_cmp_ge_u32 s{sWAVE}, 2", "s_cbranch_scc1 L_th1")
        for th in range(2):
            if th: a.label("L_th1")
            self.compute_loop(th)
            self.attention(th)
            a("s_branch L_cj")
        a.label("L_pf")
        self.prefetch_main()
        a("s_branch L_bg")
        a.label("L_ld")
        self.loader_main()
        a.label("L_bg")
        self.background_tail()
        self.b1_first(9)
        a("s_branch L_join")
        a.label("L_cj")
        self.b1_twiddles()
        self.b1_first(4)
        a.label("L_join")
        self.b1_second_setup()
        a("s_waitcnt vmcnt(0) lgkmcnt(0)", "s_barrier")
        self.stamp(5)
        self.set_flag([f"s_lshl_b32 s{sT0}, s{sRB}, 7", f"s_lshl_b32 s{sT1}, s{sHG}, 2", f"s_add_u32 s{sT0}, s{sT0}, s{sT1}", f"s_add_u32 s{sT0}, s{sT0}, {WS_FA}"])
        l = self.lab("wt")
        a(f"s_cmp_lt_u32 s{sWAVE}, 4", f"s_cbranch_scc1 {l}")
        self.wo_issue(36, 42)
        a.label(l)
        self.b1_second()
        self.stamp(6)
        self.poll_a()
        a("s_barrier")
        self.set_flag([f"s_lshl_b32 s{sT0}, s2, 2", f"s_add_u32 s{sT0}, s{sT0}, {WS_FB}"])
        self.stamp(7)
        self.a2_compute()
        self.stamp(12)
        self.finish()
        self.stamp(15, True); self.stamp(13)
        self.dump_stamps()
        a.label("L_end")
        a("s_endpgm")

HEADER = open("cdna_kernels/" + NAME + ".s.ref").read().split("; Override launch")[0]
DESC = f""".section .rodata,"a"
.p2align 6
.amdhsa_kernel {KNAME}
  .amdhsa_next_free_vgpr 256
  .amdhsa_next_free_sgpr 102
  .amdhsa_accum_offset 256
  .amdhsa_group_segment_fixed_size 0
  .amdhsa_kernarg_size 88
  .amdhsa_user_sgpr_count 2
  .amdhsa_user_sgpr_kernarg_segment_ptr 1
  .amdhsa_system_sgpr_workgroup_id_x 1
  .amdhsa_float_denorm_mode_32 3
.end_amdhsa_kernel
"""

if __name__ == "__main__":
    ap = argparse.ArgumentParser()
    ap.add_argument("-o", default="/dev/stdout")
    for f in ("stamps", "verbose", "norot", "nopf", "nobx", "iterstamp"): ap.add_argument("--" + f, action="store_true")
    ap.add_argument("--pfd", type=int, default=6); ap.add_argument("--pf0", type=int, default=4)
    ap.add_argument("--opre", type=int, default=4); ap.add_argument("--fbi", type=int, default=8); ap.add_argument("--fbc", type=int, default=11)
    opt = ap.parse_args()
    g = Gen(opt); g.kernel()
    txt = HEADER + f"; @launch grid=(256,1,1) block=(512,1,1) lds={LDS_BYTES}\n" + '.amdgcn_target "amdgcn-amd-amdhsa--gfx950"\n.text\n' + g.a.finish(opt.verbose) + DESC
    open(opt.o, "w").write(txt)
    print("nop states inserted:", g.a.inserted, "lines:", txt.count("\n"), file=sys.stderr)
```
